```python
import torch

def _softmax(x, axis=-1):
    return torch.softmax(x, dim=axis)
def _gelu(x):
    return torch.nn.functional.gelu(x, approximate="tanh")
def _silu(x):
    return torch.nn.functional.silu(x)
def _sigmoid(x):
    return torch.sigmoid(x)
def _layernorm(x, axis=-1, eps=1e-5):
    m = x.mean(dim=axis, keepdim=True)
    v = x.var(dim=axis, keepdim=True, unbiased=False)
    return (x - m) / torch.sqrt(v + eps)
def _scatter_add(tgt, idx, src, axis=0):
    return tgt.clone().index_add_(axis, idx, src)
def _segment_sum(src, seg, n):
    out = torch.zeros((n,) + src.shape[1:], dtype=src.dtype)
    return out.index_add_(0, seg, src)
def _pad(x, pw):
    flat = tuple(v for pair in reversed(pw) for v in pair)
    return torch.nn.functional.pad(x, flat)

kernel_name = 'sequential_preLN__ssm_conv_h3__moe_arch_mod__prompt'

def setup_inputs():

    _w = (lambda a: (lambda t: t.to(torch.bfloat16) if t.is_floating_point() else t)(torch.as_tensor(a)))
    def _A_setup():
        B, S, D = 1, 2048, 640
        ks = 4
        return {
            "q": _w((lambda *s: torch.randn(*s, dtype=torch.bfloat16) * 0.05)(B, S, D)),
            "k": _w((lambda *s: torch.randn(*s, dtype=torch.bfloat16) * 0.2)(B, S, D)),
            "v": _w((lambda *s: torch.randn(*s, dtype=torch.bfloat16) * 0.2)(B, S, D)),
            "shift_k": _w((lambda *s: torch.randn(*s, dtype=torch.bfloat16) * 0.2)(D, ks) * 0.5),
            "ssm_k": _w((lambda *s: torch.randn(*s, dtype=torch.bfloat16) * 0.8)(D, S) * (1.0 / S ** 0.5)),
            "ssm_D": _w((lambda *s: torch.randn(*s, dtype=torch.bfloat16) * 0.2)(D)),
        }
    _A_in = _A_setup()

    def _B_setup():
        B, S, D, F, C = 1, 2048, 640, 1728, 8
        return {
            "x": _w((lambda *s: torch.randn(*s, dtype=torch.bfloat16) * 0.05)(B, S, D)),
            "w_r": _w((lambda *s: torch.randn(*s, dtype=torch.bfloat16) * 0.05)(D)),
            "w_gate": _w((lambda *s: torch.randn(*s, dtype=torch.bfloat16) * 0.05)(D, F)),
            "w_up": _w((lambda *s: torch.randn(*s, dtype=torch.bfloat16) * 0.05)(D, F)),
            "w_down": _w((lambda *s: torch.randn(*s, dtype=torch.bfloat16) * 0.05)(F, D)),
        }
    _B_in = _B_setup()

    return {
        "A_q": _A_in["q"],
        "A_k": _A_in["k"],
        "A_v": _A_in["v"],
        "A_shift_k": _A_in["shift_k"],
        "A_ssm_k": _A_in["ssm_k"],
        "A_ssm_D": _A_in["ssm_D"],
        "B_x": _B_in["x"],
        "B_w_r": _B_in["w_r"],
        "B_w_gate": _B_in["w_gate"],
        "B_w_up": _B_in["w_up"],
        "B_w_down": _B_in["w_down"],
    }

def reference(A_q, A_k, A_v, A_shift_k, A_ssm_k, A_ssm_D, B_x, B_w_r, B_w_gate, B_w_up, B_w_down):
    def _A_ref(q, k, v, shift_k, ssm_k, ssm_D):
        B, S, D = q.shape
        ks = shift_k.shape[-1]
        k_pad = _pad(k, ((0, 0), (ks - 1, 0), (0, 0)))
        k_shift = torch.zeros_like(k)
        for t in range(ks):
            k_shift = k_shift + k_pad[:, t:t + S, :] * shift_k[:, ks - 1 - t][None, None, :]
        kv = k_shift * v
        L = 2 * S
        kv_pad = _pad(kv, ((0, 0), (0, S), (0, 0)))
        kf_pad = _pad(ssm_k, ((0, 0), (0, S)))
        kv_f = (lambda x, axes=(-2,-1): torch.fft.rfft2(x.float(), dim=axes))(kv_pad[:, None, :, :], axes=(1, 2))
        kf_f = (lambda x, axes=(-2,-1): torch.fft.rfft2(x.float(), dim=axes))(kf_pad[:, None, :], axes=(1, 2))
        kf_f = (lambda x, *d: x.permute(*d))(kf_f, 1, 2, 0)
        y_f = kv_f * kf_f[None, :, :, :]
        y = (lambda x, s, axes=(-2,-1): torch.fft.irfft2(x, s=s, dim=axes).to(torch.bfloat16))(y_f, (1, L), axes=(1, 2))[:, 0, :S, :]
        y = y + kv * ssm_D[None, None, :]
        return q * y

    def _B_ref(x, w_r, w_gate, w_up, w_down):
        B, S, D = x.shape
        C = 8
        r = x @ w_r
        idx = torch.argsort(-r, axis=-1)[:, :C]
        idx_e = (lambda x, n, axis: torch.repeat_interleave(x, n, dim=axis))(idx.reshape(B, C, 1), D, axis=2)
        x_sel = (lambda x, i, axis: torch.take_along_dim(x, i, dim=axis))(x, idx_e, axis=1)
        g = _silu(x_sel @ w_gate)
        u = x_sel @ w_up
        y = (g * u) @ w_down
        r_sel = _sigmoid((lambda x, i, axis: torch.take_along_dim(x, i, dim=axis))(r, idx, axis=1))
        y = y * r_sel.reshape(B, C, 1)
        b_off = (torch.arange(B) * S).reshape(B, 1)
        flat_idx = (idx + b_off).reshape(B * C)
        zero = (x * 0.0).reshape(B * S, D)
        upd = _scatter_add(zero, flat_idx, y.reshape(B * C, D), axis=0)
        return x + upd.reshape(B, S, D)

    x = A_q
    h = x + _A_ref(_layernorm(x, axis=-1), A_k, A_v, A_shift_k, A_ssm_k, A_ssm_D)
    h2 = h + _B_ref(_layernorm(h, axis=-1), B_w_r, B_w_gate, B_w_up, B_w_down)
    return h2
```

```python
import sys
NAME="sequential_preLN__ssm_conv_h3__moe_arch_mod__prompt"
out=[]
def E(s=""):
    out.append(s)
WS_UT=0x000000; WS_ZT=0x300000; WS_H=0x600000; WS_LNH=0x900000
WS_R=0xC00000; WS_GU=0xC10000; WS_IDX=0xC20000
SZ=2048*640*2

def srd(s, base, nbytes, off=0):
    if off:
        E(f"  s_add_u32 s{s}, s{base}, {hex(off)}")
        E(f"  s_addc_u32 s{s+1}, s{base+1}, 0")
    else:
        E(f"  s_mov_b32 s{s}, s{base}")
        E(f"  s_mov_b32 s{s+1}, s{base+1}")
    E(f"  s_mov_b32 s{s+2}, {hex(nbytes)}")
    E(f"  s_mov_b32 s{s+3}, 0x00020000")

def kstart(name):
    E(f".globl {name}")
    E(".p2align 8")
    E(f".type {name},@function")
    E(f"{name}:")

def unpack(lo, hi, src):
    E(f"  v_lshlrev_b32 v{lo}, 16, v{src}")
    E(f"  v_and_b32 v{hi}, 0xffff0000, v{src}")

def k0():
    kstart("k0_kernel")
    E("  s_cmp_ge_u32 s2, 320")
    E("  s_cbranch_scc1 k0_done")
    E("  s_load_dwordx2 s[4:5], s[0:1], 8")
    E("  s_load_dwordx2 s[6:7], s[0:1], 16")
    E("  s_load_dwordx2 s[24:25], s[0:1], 24")
    E("  s_load_dwordx2 s[26:27], s[0:1], 104")
    E("  s_mov_b32 s28, 0x1999999A")
    E("  s_mul_hi_u32 s29, s2, s28")
    E("  s_mul_i32 s30, s29, 10")
    E("  s_sub_u32 s30, s2, s30")
    E("  v_and_b32 v1, 7, v0")
    E("  v_lshrrev_b32 v2, 3, v0")
    E("  s_waitcnt lgkmcnt(0)")
    srd(8,4,SZ); srd(12,6,SZ); srd(16,24,640*8); srd(20,26,SZ,WS_UT)
    E("  s_lshl_b32 s31, s29, 6")
    E("  v_lshlrev_b32 v3, 1, v2")
    E("  v_add_u32 v3, s31, v3")
    E("  s_movk_i32 s33, 1280")
    E("  v_mul_lo_u32 v3, v3, s33")
    E("  s_lshl_b32 s32, s30, 7")
    E("  v_lshlrev_b32 v4, 4, v1")
    E("  v_add3_u32 v3, v3, s32, v4")
    for j in range(5):
        E(f"  v_add_u32 v{10+j}, {(j-3)*1280}, v3")
    E("  v_add_u32 v15, 1280, v3")
    for j in range(5):
        E(f"  buffer_load_dwordx4 v[{20+4*j}:{23+4*j}], v{10+j}, s[8:11], 0 offen")
    E("  buffer_load_dwordx4 v[40:43], v3, s[12:15], 0 offen")
    E("  buffer_load_dwordx4 v[44:47], v15, s[12:15], 0 offen")
    E("  s_lshl_b32 s34, s30, 9")
    E("  v_lshlrev_b32 v5, 6, v1")
    E("  v_add_u32 v5, s34, v5")
    for j in range(4):
        E(f"  buffer_load_dwordx4 v[{48+4*j}:{51+4*j}], v5, s[16:19], 0 offen offset:{16*j}")
    E("  v_lshrrev_b32 v6, 2, v2")
    E("  v_lshlrev_b32 v6, 2, v6")
    E("  v_and_b32 v7, 3, v2")
    E("  v_sub_u32 v7, 3, v7")
    E("  v_add_u32 v6, v6, v7")
    E("  v_lshlrev_b32 v6, 2, v6")
    E("  s_movk_i32 s35, 1152")
    E("  v_mul_lo_u32 v7, v1, s35")
    E("  v_add_u32 v6, v6, v7")
    E("  s_waitcnt vmcnt(0)")
    for c in range(8):
        unpack(64+4*c+0, 64+4*c+1, 48+2*c)
        unpack(64+4*c+2, 64+4*c+3, 49+2*c)
    for j in range(5):
        for d in range(4):
            unpack(100+8*j+2*d, 100+8*j+2*d+1, 20+4*j+d)
    for i in range(2):
        for d in range(4):
            unpack(140+8*i+2*d, 140+8*i+2*d+1, 40+4*i+d)
    for i in range(2):
        for d in range(4):
            c0=2*d; c1=2*d+1
            t=160
            for j in range(4):
                E(f"  v_mul_f32 v{t+2*j}, v{100+8*(i+j)+c0}, v{64+4*c0+3-j}")
                E(f"  v_mul_f32 v{t+2*j+1}, v{100+8*(i+j)+c1}, v{64+4*c1+3-j}")
            for j in range(4):
                E(f"  v_cvt_pk_bf16_f32 v{t+8+j}, v{t+2*j}, v{t+2*j+1}")
            for j in range(4):
                unpack(t+2*j, t+2*j+1, t+8+j)
            for j in range(1,4):
                E(f"  v_add_f32 v{t}, v{t}, v{t+2*j}")
                E(f"  v_add_f32 v{t+1}, v{t+1}, v{t+2*j+1}")
                E(f"  v_cvt_pk_bf16_f32 v{t+12}, v{t}, v{t+1}")
                unpack(t, t+1, t+12)
            E(f"  v_mul_f32 v{180+8*i+c0}, v{t}, v{140+8*i+c0}")
            E(f"  v_mul_f32 v{180+8*i+c1}, v{t+1}, v{140+8*i+c1}")
    for c in range(8):
        E(f"  v_cvt_pk_bf16_f32 v{200+c}, v{188+c}, v{180+c}")
    for c in range(8):
        E(f"  ds_write_b32 v6, v{200+c} offset:{144*c}")
    E("  s_waitcnt lgkmcnt(0)")
    E("  s_barrier")
    E("  v_lshrrev_b32 v8, 2, v0")
    E("  v_and_b32 v9, 3, v0")
    E("  s_movk_i32 s35, 144")
    E("  v_mul_lo_u32 v16, v8, s35")
    E("  v_lshl_add_u32 v16, v9, 4, v16")
    E("  ds_read_b128 v[210:213], v16")
    E("  ds_read_b128 v[214:217], v16 offset:64")
    E("  s_lshl_b32 s36, s30, 18")
    E("  s_lshl_b32 s37, s29, 7")
    E("  s_add_u32 s36, s36, s37")
    E("  v_lshlrev_b32 v17, 12, v8")
    E("  v_lshl_add_u32 v17, v9, 4, v17")
    E("  v_add_u32 v17, s36, v17")
    E("  s_waitcnt lgkmcnt(0)")
    E("  buffer_store_dwordx4 v[210:213], v17, s[20:23], 0 offen")
    E("  buffer_store_dwordx4 v[214:217], v17, s[20:23], 0 offen offset:64")
    E("k0_done:")
    E("  s_endpgm")

HSTR=266*16
UB=8*HSTR
K1_LDS=UB+512+4096
def k1():
    kstart("k1_kernel")
    E("  s_cmp_ge_u32 s2, 640")
    E("  s_cbranch_scc1 k1_done")
    E("  s_load_dwordx2 s[4:5], s[0:1], 32")
    E("  s_load_dwordx2 s[6:7], s[0:1], 40")
    E("  s_load_dwordx2 s[26:27], s[0:1], 104")
    E("  s_lshl_b32 s28, s2, 12")
    E("  s_waitcnt lgkmcnt(0)")
    E("  s_add_u32 s8, s4, s28"); E("  s_addc_u32 s9, s5, 0"); E("  s_movk_i32 s10, 4096"); E("  s_mov_b32 s11, 0x00020000")
    E(f"  s_add_u32 s29, s28, {hex(WS_UT)}")
    E("  s_add_u32 s12, s26, s29"); E("  s_addc_u32 s13, s27, 0"); E("  s_movk_i32 s14, 4096"); E("  s_mov_b32 s15, 0x00020000")
    E(f"  s_add_u32 s29, s28, {hex(WS_ZT)}")
    E("  s_add_u32 s16, s26, s29"); E("  s_addc_u32 s17, s27, 0"); E("  s_movk_i32 s18, 4096"); E("  s_mov_b32 s19, 0x00020000")
    srd(20,6,1280)
    E("  v_lshlrev_b32 v1, 4, v0")
    E("  v_add_u32 v2, -32, v1")
    E("  v_add_u32 v3, -16, v1")
    E("  buffer_load_dwordx4 v[10:13], v2, s[8:11], 0 offen")
    E("  buffer_load_dwordx4 v[14:17], v3, s[8:11], 0 offen")
    E("  buffer_load_dwordx4 v[40:43], v1, s[12:15], 0 offen")
    E("  v_add_u32 v4, 4064, v1")
    E("  v_add_u32 v5, 4080, v1")
    E("  buffer_load_dwordx4 v[44:47], v4, s[8:11], 0 offen")
    E("  buffer_load_dwordx4 v[48:51], v5, s[8:11], 0 offen")
    E("  s_lshl_b32 s30, s2, 1")
    E("  v_mov_b32 v6, s30")
    E("  buffer_load_ushort v7, v6, s[20:23], 0 offen")
    def fill(wbase, addr):
        w=wbase
        for k in range(7):
            E(f"  v_alignbit_b32 v{20+k}, v{w+k+1}, v{w+k}, 16")
        for c in range(8):
            if c%2==0: src=w+c//2
            else: src=20+(c-1)//2
            if src%2==1:
                t=28+4*((c//2)%2)
                for q in range(4):
                    E(f"  v_mov_b32 v{t+q}, v{src+q}")
                src=t
            E(f"  ds_write_b128 v{addr}, v[{src}:{src+3}] offset:{c*HSTR}")
    E("  s_waitcnt vmcnt(4)")
    fill(10,1)
    E("  s_waitcnt vmcnt(3)")
    E(f"  ds_write_b128 v1, v[40:43] offset:{UB+512}")
    E("  v_mov_b32 v36, 0"); E("  v_mov_b32 v37, 0"); E("  v_mov_b32 v38, 0"); E("  v_mov_b32 v39, 0")
    E("  v_cmp_gt_u32 vcc, 32, v0")
    E("  s_and_saveexec_b64 s[32:33], vcc")
    E(f"  ds_write_b128 v1, v[36:39] offset:{UB}")
    E("  s_mov_b64 exec, s[32:33]")
    E("  s_waitcnt vmcnt(1)")
    E("  v_cmp_gt_u32 vcc, 2, v0")
    E("  s_and_saveexec_b64 s[32:33], vcc")
    E("  v_add_u32 v8, 4096, v1")
    fill(44,8)
    E("  s_mov_b64 exec, s[32:33]")
    E("  s_waitcnt vmcnt(0) lgkmcnt(0)")
    E("  s_barrier")
    E("  v_and_b32 v50, 63, v0")
    E("  v_lshrrev_b32 v51, 6, v0")
    E("  v_and_b32 v52, 15, v50")
    E("  v_lshrrev_b32 v53, 4, v50")
    E("  v_add_u32 v54, 1, v52")
    E("  v_and_b32 v55, 7, v54")
    E(f"  s_movk_i32 s34, {HSTR}")
    E("  v_mul_lo_u32 v55, v55, s34")
    E("  v_lshrrev_b32 v54, 3, v54")
    E("  v_sub_u32 v54, v54, v53")
    E("  v_add_u32 v54, 3, v54")
    E("  v_lshl_add_u32 v55, v54, 4, v55")
    E("  v_lshl_add_u32 v55, v51, 7, v55")
    E("  v_lshlrev_b32 v56, 5, v52")
    E("  v_lshl_add_u32 v56, v53, 4, v56")
    E(f"  v_add_u32 v56, {UB+512-32}, v56")
    E("  v_lshlrev_b32 v57, 7, v51")
    E("  v_sub_u32 v56, v56, v57")
    for i in range(32):
        E(f"  v_mov_b32 v{64+i}, 0")
    for rr in range(2):
        for k in range(8):
            off=512*k-64*rr
            if off<0:
                E(f"  v_add_u32 v58, {off}, v56")
                E(f"  ds_read_b128 v[{100+4*k}:{103+4*k}], v58")
            else:
                E(f"  ds_read_b128 v[{100+4*k}:{103+4*k}], v56 offset:{off}")
        for pp in range(8):
            E(f"  ds_read_b128 v[{132+4*pp}:{135+4*pp}], v55 offset:{(8*pp+rr)*64}")
        for pp in range(8):
            E(f"  s_waitcnt lgkmcnt({7-pp})")
            for i in range(pp,8):
                E(f"  v_mfma_f32_16x16x32_bf16 v[{64+4*i}:{67+4*i}], v[{132+4*pp}:{135+4*pp}], v[{100+4*(i-pp)}:{103+4*(i-pp)}], v[{64+4*i}:{67+4*i}]")
        E("  s_nop 7")
    E("  s_nop 7")
    E("  s_barrier")
    E("  v_lshlrev_b32 v58, 4, v50")
    E("  v_lshl_add_u32 v58, v51, 13, v58")
    for i in range(8):
        E(f"  ds_write_b128 v58, v[{64+4*i}:{67+4*i}] offset:{1024*i}")
    E("  s_waitcnt lgkmcnt(0)")
    E("  s_barrier")
    E("  v_lshlrev_b32 v58, 4, v50")
    E("  v_lshl_add_u32 v58, v51, 11, v58")
    for tt in range(2):
        for ww in range(4):
            E(f"  ds_read_b128 v[{100+16*tt+4*ww}:{103+16*tt+4*ww}], v58 offset:{ww*8192+tt*1024}")
    E("  v_lshlrev_b32 v59, 1, v52")
    E("  v_lshrrev_b32 v60, 1, v53")
    E("  v_add_u32 v59, v59, v60")
    E("  v_lshlrev_b32 v59, 4, v59")
    E("  v_lshl_add_u32 v59, v51, 10, v59")
    E("  v_and_b32 v60, 1, v53")
    E("  v_sub_u32 v60, 1, v60")
    E("  v_lshl_add_u32 v59, v60, 3, v59")
    E(f"  ds_read_b64 v[140:141], v59 offset:{UB+512}")
    E(f"  ds_read_b64 v[142:143], v59 offset:{UB+512+512}")
    E("  v_lshlrev_b32 v61, 16, v7")
    E("  v_lshlrev_b32 v62, 5, v52")
    E("  v_lshl_add_u32 v62, v53, 3, v62")
    E("  v_lshl_add_u32 v62, v51, 10, v62")
    E("  s_waitcnt lgkmcnt(0)")
    for tt in range(2):
        b=100+16*tt
        for q in range(4):
            E(f"  v_add_f32 v{b+q}, v{b+q}, v{b+4+q}")
            E(f"  v_add_f32 v{b+8+q}, v{b+8+q}, v{b+12+q}")
        for q in range(4):
            E(f"  v_add_f32 v{b+q}, v{b+q}, v{b+8+q}")
        E(f"  v_cvt_pk_bf16_f32 v150, v{b}, v{b+1}")
        E(f"  v_cvt_pk_bf16_f32 v151, v{b+2}, v{b+3}")
        unpack(b, b+1, 150); unpack(b+2, b+3, 151)
        uA=140+2*tt; uB=141+2*tt
        unpack(155,154,uA)
        unpack(153,152,uB)
        for q in range(4):
            E(f"  v_mul_f32 v{152+q}, v{152+q}, v61")
        E("  v_cvt_pk_bf16_f32 v150, v152, v153")
        E("  v_cvt_pk_bf16_f32 v151, v154, v155")
        unpack(152,153,150); unpack(154,155,151)
        for q in range(4):
            E(f"  v_add_f32 v{b+q}, v{b+q}, v{152+q}")
        E(f"  v_cvt_pk_bf16_f32 v{156+2*tt}, v{b}, v{b+1}")
        E(f"  v_cvt_pk_bf16_f32 v{157+2*tt}, v{b+2}, v{b+3}")
        E(f"  buffer_store_dwordx2 v[{156+2*tt}:{157+2*tt}], v62, s[16:19], 0 offen offset:{512*tt}")
    E("k1_done:")
    E("  s_endpgm")

def wave_reduce8(base):
    for ctl in ["row_shr:1","row_shr:2","row_shr:4","row_shr:8"]:
        for i in range(8):
            E(f"  v_add_f32_dpp v{base+i}, v{base+i}, v{base+i} {ctl} row_mask:0xf bank_mask:0xf bound_ctrl:0")
    for i in range(8):
        E(f"  v_add_f32_dpp v{base+i}, v{base+i}, v{base+i} row_bcast:15 row_mask:0xa bank_mask:0xf")
    for i in range(8):
        E(f"  v_add_f32_dpp v{base+i}, v{base+i}, v{base+i} row_bcast:31 row_mask:0xc bank_mask:0xf")

NW2=5
def block_reduce8(base, dst, slot):
    wave_reduce8(base)
    E("  s_nop 1")
    E("  s_mov_b64 s[40:41], exec")
    E("  s_mov_b32 s42, 0"); E("  s_mov_b32 s43, 0x80000000")
    E("  s_mov_b64 exec, s[42:43]")
    E(f"  ds_write_b128 v3, v[{base}:{base+3}] offset:{slot*160}")
    E(f"  ds_write_b128 v3, v[{base+4}:{base+7}] offset:{slot*160+16}")
    E("  s_mov_b64 exec, s[40:41]")
    E("  s_waitcnt lgkmcnt(0)")
    E("  s_barrier")
    E("  v_mov_b32 v4, 0")
    for w in range(NW2):
        E(f"  ds_read_b128 v[{200+8*w}:{203+8*w}], v4 offset:{slot*160+32*w}")
        E(f"  ds_read_b128 v[{204+8*w}:{207+8*w}], v4 offset:{slot*160+32*w+16}")
    E("  s_waitcnt lgkmcnt(0)")
    for i in range(8):
        E(f"  v_add_f32 v{dst+i}, v{200+i}, v{208+i}")
        E(f"  v_add_f32 v{216+i}, v{216+i}, v{224+i}")
    for i in range(8):
        E(f"  v_add_f32 v{dst+i}, v{dst+i}, v{216+i}")
        E(f"  v_add_f32 v{dst+i}, v{dst+i}, v{232+i}")

def round_pair(a,b,tmp):
    E(f"  v_cvt_pk_bf16_f32 v{tmp}, v{a}, v{b}")
    unpack(a,b,tmp)

def layernorm(X, OUTR, slot):
    for i in range(8):
        E(f"  v_add_f32 v{100+i}, v{X+2*i}, v{X+2*i+1}")
    block_reduce8(100,108,slot)
    E("  s_mov_b32 s44, 0x3acccccd")
    for i in range(8):
        E(f"  v_mul_f32 v{108+i}, s44, v{108+i}")
    for i in range(8):
        E(f"  v_sub_f32 v{116+2*i}, v{X+2*i}, v{108+i}")
        E(f"  v_sub_f32 v{117+2*i}, v{X+2*i+1}, v{108+i}")
    for i in range(8):
        E(f"  v_mul_f32 v{100+i}, v{116+2*i}, v{116+2*i}")
        E(f"  v_fmac_f32 v{100+i}, v{117+2*i}, v{117+2*i}")
    block_reduce8(100,132,slot+1)
    for i in range(8):
        E(f"  v_mul_f32 v{132+i}, s44, v{132+i}")
    for i in range(0,8,2):
        round_pair(108+i,109+i,140)
        round_pair(132+i,133+i,141)
    E("  s_mov_b32 s45, 0x3727c5ac")
    for i in range(8):
        E(f"  v_add_f32 v{132+i}, s45, v{132+i}")
    for i in range(0,8,2):
        round_pair(132+i,133+i,141)
    for i in range(8):
        E(f"  v_sqrt_f32 v{132+i}, v{132+i}")
    E("  s_nop 0")
    for i in range(0,8,2):
        round_pair(132+i,133+i,141)
    for i in range(8):
        E(f"  v_rcp_f32 v{100+i}, v{132+i}")
    for i in range(8):
        E(f"  v_sub_f32 v{116+2*i}, v{X+2*i}, v{108+i}")
        E(f"  v_sub_f32 v{117+2*i}, v{X+2*i+1}, v{108+i}")
        round_pair(116+2*i,117+2*i,140)
    for i in range(8):
        for hh in range(2):
            d=116+2*i+hh; o=OUTR+2*i+hh
            E(f"  v_mul_f32 v{o}, v{d}, v{100+i}")
            E(f"  v_fma_f32 v{d}, -v{o}, v{132+i}, v{d}")
            E(f"  v_fmac_f32 v{o}, v{d}, v{100+i}")
        round_pair(OUTR+2*i,OUTR+2*i+1,140)

def k2():
    kstart("k2_kernel")
    E("  s_cmp_ge_u32 s2, 256")
    E("  s_cbranch_scc1 k2_done")
    E("  s_load_dwordx2 s[4:5], s[0:1], 0")
    E("  s_load_dwordx2 s[6:7], s[0:1], 56")
    E("  s_load_dwordx2 s[24:25], s[0:1], 88")
    E("  s_load_dwordx2 s[26:27], s[0:1], 104")
    E("  s_waitcnt lgkmcnt(0)")
    srd(8,4,SZ); srd(12,6,1280); srd(16,24,SZ); srd(20,26,SZ,WS_ZT)
    srd(28,26,SZ,WS_H); srd(32,26,SZ,WS_LNH); srd(36,26,8192,WS_R)
    E("  s_mul_i32 s46, s2, 10240")
    E("  v_lshlrev_b32 v1, 2, v0")
    E("  v_add_u32 v1, s46, v1")
    for i in range(8):
        E(f"  buffer_load_dword v{10+i}, v1, s[8:11], 0 offen offset:{1280*i}" if 1280*i<4096 else
          f"  buffer_load_dword v{10+i}, v5, s[8:11], 0 offen offset:{1280*i-5120}")
        if i==3:
            E("  v_add_u32 v5, 5120, v1")
    E("  s_lshl_b32 s47, s2, 4")
    E("  v_lshlrev_b32 v2, 13, v0")
    E("  v_add_u32 v2, s47, v2")
    E("  v_add_u32 v6, 4096, v2")
    E("  buffer_load_dwordx4 v[20:23], v2, s[20:23], 0 offen")
    E("  buffer_load_dwordx4 v[24:27], v6, s[20:23], 0 offen")
    E("  v_lshlrev_b32 v7, 2, v0")
    E("  buffer_load_dword v28, v7, s[12:15], 0 offen")
    E("  v_lshrrev_b32 v3, 6, v0")
    E("  v_lshlrev_b32 v3, 5, v3")
    E("  s_waitcnt vmcnt(0)")
    for i in range(8):
        unpack(30+2*i,31+2*i,10+i)
    layernorm(30,46,0)
    for q in range(4):
        unpack(62+4*q, 64+4*q, 20+q)
        unpack(63+4*q, 65+4*q, 24+q)
    for i in range(16):
        E(f"  v_mul_f32 v{62+i}, v{46+i}, v{62+i}")
    for i in range(8):
        round_pair(62+2*i,63+2*i,140)
    for i in range(16):
        E(f"  v_add_f32 v{62+i}, v{30+i}, v{62+i}")
    for i in range(8):
        E(f"  v_cvt_pk_bf16_f32 v{10+i}, v{62+2*i}, v{63+2*i}")
        unpack(62+2*i,63+2*i,10+i)
    for i in range(8):
        E(f"  buffer_store_dword v{10+i}, v1, s[28:31], 0 offen offset:{1280*i}" if 1280*i<4096 else
          f"  buffer_store_dword v{10+i}, v5, s[28:31], 0 offen offset:{1280*i-5120}")
    layernorm(62,78,2)
    for i in range(8):
        E(f"  v_cvt_pk_bf16_f32 v{20+i if i<8 else 0}, v{78+2*i}, v{79+2*i}")
    for i in range(8):
        E(f"  buffer_store_dword v{20+i}, v1, s[32:35], 0 offen offset:{1280*i}" if 1280*i<4096 else
          f"  buffer_store_dword v{20+i}, v5, s[32:35], 0 offen offset:{1280*i-5120}")
    for i in range(16):
        E(f"  v_add_f32 v{46+i}, v{62+i}, v{78+i}")
    for i in range(8):
        E(f"  v_cvt_pk_bf16_f32 v{142+i}, v{46+2*i}, v{47+2*i}")
    for i in range(8):
        E(f"  buffer_store_dword v{142+i}, v1, s[16:19], 0 offen offset:{1280*i}" if 1280*i<4096 else
          f"  buffer_store_dword v{142+i}, v5, s[16:19], 0 offen offset:{1280*i-5120}")
    unpack(94,95,28)
    for i in range(8):
        E(f"  v_mul_f32 v{100+i}, v{78+2*i}, v94")
        E(f"  v_fmac_f32 v{100+i}, v{79+2*i}, v95")
    block_reduce8(100,108,4)
    for i in range(0,8,2):
        round_pair(108+i,109+i,140)
    E("  v_cmp_eq_u32 vcc, 0, v0")
    E("  s_and_saveexec_b64 s[40:41], vcc")
    E("  s_lshl_b32 s47, s2, 5")
    E("  v_mov_b32 v8, s47")
    E("  buffer_store_dwordx4 v[108:111], v8, s[36:39], 0 offen")
    E("  buffer_store_dwordx4 v[112:115], v8, s[36:39], 0 offen offset:16")
    E("k2_done:")
    E("  s_endpgm")

def topk():
    E("  v_mov_b32 v30, 0")
    for rnd in range(8):
        E("  v_max3_u32 v20, v10, v11, v12")
        E("  v_max3_u32 v21, v13, v14, v15")
        E("  v_max3_u32 v20, v20, v16, v17")
        E("  v_max_u32 v20, v20, v21")
        E("  s_nop 1")
        for ctl in ["row_shr:1","row_shr:2","row_shr:4","row_shr:8"]:
            E(f"  v_max_u32_dpp v20, v20, v20 {ctl} row_mask:0xf bank_mask:0xf bound_ctrl:0")
            E("  s_nop 1")
        E("  v_max_u32_dpp v20, v20, v20 row_bcast:15 row_mask:0xa bank_mask:0xf")
        E("  s_nop 1")
        E("  v_max_u32_dpp v20, v20, v20 row_bcast:31 row_mask:0xc bank_mask:0xf")
        E("  s_nop 1")
        E("  v_readlane_b32 s50, v20, 63")
        E("  s_nop 3")
        E(f"  v_writelane_b32 v30, s50, {rnd}")
        for i in range(8):
            E(f"  v_cmp_ne_u32 vcc, s50, v{10+i}")
            E("  s_nop 1")
            E(f"  v_cndmask_b32 v{10+i}, 0, v{10+i}, vcc")
    E("  v_and_b32 v31, 63, v0")
    E("  v_lshrrev_b32 v32, 6, v0")
    E("  v_lshlrev_b32 v33, 3, v32")
    E("  v_add_u32 v33, v33, v31")
    E("  v_lshlrev_b32 v33, 2, v33")
    E("  v_cmp_gt_u32 vcc, 8, v31")
    E("  s_and_saveexec_b64 s[40:41], vcc")
    E(f"  ds_write_b32 v33, v30 offset:{TK_OFF}")
    E("  s_mov_b64 exec, s[40:41]")
    E("  s_waitcnt lgkmcnt(0)")
    E("  s_barrier")
    E("  v_and_b32 v34, 31, v0")
    E("  v_lshlrev_b32 v34, 2, v34")
    E(f"  ds_read_b32 v35, v34 offset:{TK_OFF}")
    E("  v_mov_b32 v36, 0")
    for q in range(8):
        E(f"  ds_read_b128 v[{40+4*q}:{43+4*q}], v36 offset:{TK_OFF+16*q}")
    E("  s_waitcnt lgkmcnt(0)")
    E("  v_mov_b32 v37, 0")
    for q in range(32):
        E(f"  v_cmp_gt_u32 vcc, v{40+q}, v35")
        E(f"  v_addc_co_u32 v37, vcc, 0, v37, vcc")
    E("  v_cmp_gt_u32 s[42:43], 8, v37")
    E("  v_cmp_gt_u32 vcc, 32, v0")
    E("  s_nop 1")
    E("  s_and_b64 vcc, vcc, s[42:43]")
    E("  s_and_saveexec_b64 s[40:41], vcc")
    E("  v_lshlrev_b32 v38, 2, v37")
    E(f"  ds_write_b32 v38, v35 offset:{TK_OFF+128}")
    E("  s_mov_b64 exec, s[40:41]")
    E("  s_waitcnt lgkmcnt(0)")
    E("  s_barrier")

TK_OFF=16384
def k3():
    kstart("k3_kernel")
    E("  s_cmp_ge_u32 s2, 54")
    E("  s_cbranch_scc1 k3_done")
    E("  s_load_dwordx2 s[4:5], s[0:1], 64")
    E("  s_load_dwordx2 s[6:7], s[0:1], 72")
    E("  s_load_dwordx2 s[26:27], s[0:1], 104")
    E("  s_waitcnt lgkmcnt(0)")
    srd(8,4,640*1728*2); srd(12,6,640*1728*2); srd(16,26,8192,WS_R); srd(20,26,SZ,WS_LNH)
    srd(28,26,8*1728*2,WS_GU); srd(32,26,256,WS_IDX)
    E("  v_lshlrev_b32 v1, 5, v0")
    E("  buffer_load_dwordx4 v[10:13], v1, s[16:19], 0 offen")
    E("  buffer_load_dwordx4 v[14:17], v1, s[16:19], 0 offen offset:16")
    E("  v_and_b32 v2, 63, v0")
    E("  v_lshrrev_b32 v3, 6, v0")
    E("  v_and_b32 v4, 15, v2")
    E("  v_lshrrev_b32 v5, 4, v2")
    E("  s_movk_i32 s44, 160")
    E("  v_mul_lo_u32 v6, v3, s44")
    E("  v_lshl_add_u32 v6, v5, 3, v6")
    E("  s_movk_i32 s45, 3456")
    E("  v_mul_lo_u32 v7, v6, s45")
    E("  s_lshl_b32 s46, s2, 6")
    E("  v_lshl_add_u32 v7, v4, 2, v7")
    E("  v_add_u32 v7, s46, v7")
    for ks in range(5):
        for i in range(8):
            E(f"  s_mov_b32 s47, {(ks*32+i)*3456}")
            E(f"  buffer_load_dword v{96+8*ks+i}, v7, s[8:11], s47 offen")
            E(f"  buffer_load_dword v{136+8*ks+i}, v7, s[12:15], s47 offen")
    E("  s_waitcnt vmcnt(63)")
    E("  s_waitcnt vmcnt(63)")
    for i in range(8):
        E(f"  v_ashrrev_i32 v20, 31, v{10+i}")
        E(f"  v_or_b32 v20, 0x80000000, v20")
        E(f"  v_xor_b32 v{10+i}, v{10+i}, v20")
        E(f"  v_and_b32 v{10+i}, 0xffff0000, v{10+i}")
        E(f"  v_lshlrev_b32 v21, 3, v0")
        E(f"  v_sub_u32 v21, {0xFFFF-i}, v21")
        E(f"  v_or_b32 v{10+i}, v{10+i}, v21")
    topk()
    E("  v_and_b32 v8, 7, v4")
    E("  v_lshlrev_b32 v8, 2, v8")
    E(f"  ds_read_b32 v9, v8 offset:{TK_OFF+128}")
    E("  s_waitcnt lgkmcnt(0)")
    E("  v_and_b32 v18, 0xffff, v9")
    E("  v_sub_u32 v18, 0xffff, v18")
    E("  s_movk_i32 s44, 1280")
    E("  v_mul_lo_u32 v19, v18, s44")
    E("  v_lshl_add_u32 v19, v6, 1, v19")
    for ks in range(5):
        E(f"  buffer_load_dwordx4 v[{176+4*ks}:{179+4*ks}], v19, s[20:23], 0 offen offset:{64*ks}")
    E("  v_and_b32 v20, 0xffff0000, v9")
    E("  v_ashrrev_i32 v21, 31, v20")
    E("  v_not_b32 v21, v21")
    E("  v_or_b32 v21, 0x80000000, v21")
    E("  v_xor_b32 v20, v20, v21")
    E("  v_and_b32 v20, 0xffff0000, v20")
    E("  v_mul_f32 v22, 0xbfb8aa3b, v20")
    E("  v_exp_f32 v22, v22")
    E("  s_nop 0")
    E("  v_add_f32 v22, 1.0, v22")
    E("  v_rcp_f32 v22, v22")
    E("  s_nop 0")
    E("  v_cvt_pk_bf16_f32 v22, v22, v22")
    E("  v_lshlrev_b32 v22, 16, v22")
    E("  s_cmp_lg_u32 s2, 0")
    E("  s_cbranch_scc1 k3_skipidx")
    E("  v_cmp_gt_u32 vcc, 8, v0")
    E("  s_and_saveexec_b64 s[40:41], vcc")
    E("  v_lshlrev_b32 v23, 2, v0")
    E("  buffer_store_dword v18, v23, s[32:35], 0 offen")
    E("  buffer_store_dword v22, v23, s[32:35], 0 offen offset:32")
    E("  s_mov_b64 exec, s[40:41]")
    E("k3_skipidx:")
    for i in range(16):
        E(f"  v_mov_b32 v{40+i}, 0")
    E("  s_waitcnt vmcnt(0)")
    E("  s_mov_b32 s44, 0x05040100")
    E("  s_mov_b32 s45, 0x07060302")
    for ks in range(5):
        for mat,(wb,acc) in enumerate([(96,40),(136,48)]):
            for par,sel in enumerate(["s44","s45"]):
                fr=60+4*par
                for q in range(4):
                    E(f"  v_perm_b32 v{fr+q}, v{wb+8*ks+2*q+1}, v{wb+8*ks+2*q}, {sel}")
                E("  s_nop 1")
                E(f"  v_mfma_f32_16x16x32_bf16 v[{acc+4*par}:{acc+4*par+3}], v[{176+4*ks}:{179+4*ks}], v[{fr}:{fr+3}], v[{acc+4*par}:{acc+4*par+3}]")
                E("  s_nop 3")
    E("  s_nop 7")
    E("  s_nop 7")
    E("  v_lshlrev_b32 v24, 4, v2")
    E("  v_lshl_add_u32 v24, v3, 12, v24")
    for q in range(4):
        E(f"  ds_write_b128 v24, v[{40+4*q}:{43+4*q}] offset:{1024*q}")
    E("  s_waitcnt lgkmcnt(0)")
    E("  s_barrier")
    E("  v_cmp_gt_u32 vcc, 32, v0")
    E("  s_and_saveexec_b64 s[40:41], vcc")
    E("  s_cbranch_execz k3_done")
    E("  v_lshlrev_b32 v24, 4, v0")
    for w in range(4):
        for q in range(4):
            E(f"  ds_read_b128 v[{64+16*w+4*q}:{67+16*w+4*q}], v24 offset:{4096*w+1024*q}")
    E("  s_waitcnt lgkmcnt(0)")
    for j in range(16):
        E(f"  v_add_f32 v{64+j}, v{64+j}, v{80+j}")
        E(f"  v_add_f32 v{96+j}, v{96+j}, v{112+j}")
    for j in range(16):
        E(f"  v_add_f32 v{64+j}, v{64+j}, v{96+j}")
    for j in range(0,16,2):
        round_pair(64+j,65+j,140)
    for j in range(8):
        E(f"  v_mul_f32 v{80+j}, 0xbfb8aa3b, v{64+j}")
    for j in range(8):
        E(f"  v_exp_f32 v{80+j}, v{80+j}")
    E("  s_nop 0")
    for j in range(8):
        E(f"  v_add_f32 v{80+j}, 1.0, v{80+j}")
    for j in range(8):
        E(f"  v_rcp_f32 v{80+j}, v{80+j}")
    E("  s_nop 0")
    for j in range(8):
        E(f"  v_mul_f32 v{80+j}, v{64+j}, v{80+j}")
    for j in range(0,8,2):
        round_pair(80+j,81+j,140)
    for j in range(8):
        E(f"  v_mul_f32 v{80+j}, v{80+j}, v{72+j}")
    E("  v_lshlrev_b32 v25, 2, v5")
    E("  s_movk_i32 s44, 3456")
    E("  v_mul_lo_u32 v25, v25, s44")
    E("  v_lshl_add_u32 v25, v4, 2, v25")
    E("  v_add_u32 v25, s46, v25")
    for i in range(4):
        E(f"  v_cvt_pk_bf16_f32 v{90+i}, v{80+i}, v{84+i}")
        E(f"  s_mov_b32 s47, {3456*i}")
        E(f"  buffer_store_dword v{90+i}, v25, s[28:31], s47 offen")
    E("k3_done:")
    E("  s_endpgm")

def k4():
    kstart("k4_kernel")
    E("  s_cmp_ge_u32 s2, 20")
    E("  s_cbranch_scc1 k4_done")
    E("  s_load_dwordx2 s[4:5], s[0:1], 80")
    E("  s_load_dwordx2 s[24:25], s[0:1], 88")
    E("  s_load_dwordx2 s[26:27], s[0:1], 104")
    E("  s_waitcnt lgkmcnt(0)")
    srd(8,4,640*1728*2); srd(12,24,SZ); srd(16,26,SZ,WS_H); srd(20,26,SZ,WS_LNH)
    srd(28,26,8*1728*2,WS_GU); srd(32,26,256,WS_IDX)
    E("  v_and_b32 v2, 63, v0")
    E("  v_lshrrev_b32 v3, 6, v0")
    E("  v_and_b32 v4, 15, v2")
    E("  v_lshrrev_b32 v5, 4, v2")
    E("  s_movk_i32 s44, 192")
    E("  v_mul_lo_u32 v6, v3, s44")
    E("  v_lshl_add_u32 v6, v5, 3, v6")
    E("  s_movk_i32 s45, 1280")
    E("  v_mul_lo_u32 v7, v6, s45")
    E("  s_lshl_b32 s46, s2, 6")
    E("  v_lshl_add_u32 v7, v4, 2, v7")
    E("  v_add_u32 v7, s46, v7")
    for ks in range(6):
        for i in range(8):
            E(f"  s_mov_b32 s47, {(ks*32+i)*1280}")
            E(f"  buffer_load_dword v{96+8*ks+i}, v7, s[8:11], s47 offen")
    E("  v_and_b32 v8, 7, v4")
    E("  s_movk_i32 s44, 3456")
    E("  v_mul_lo_u32 v9, v8, s44")
    E("  v_lshl_add_u32 v9, v6, 1, v9")
    for ks in range(6):
        E(f"  buffer_load_dwordx4 v[{144+4*ks}:{147+4*ks}], v9, s[28:31], 0 offen offset:{64*ks}")
    for i in range(8):
        E(f"  v_mov_b32 v{40+i}, 0")
    E("  s_mov_b32 s44, 0x05040100")
    E("  s_mov_b32 s45, 0x07060302")
    E("  s_waitcnt vmcnt(0)")
    for ks in range(6):
        for par,sel in enumerate(["s44","s45"]):
            fr=60+4*par
            for q in range(4):
                E(f"  v_perm_b32 v{fr+q}, v{96+8*ks+2*q+1}, v{96+8*ks+2*q}, {sel}")
            E("  s_nop 1")
            E(f"  v_mfma_f32_16x16x32_bf16 v[{40+4*par}:{43+4*par}], v[{144+4*ks}:{147+4*ks}], v[{fr}:{fr+3}], v[{40+4*par}:{43+4*par}]")
            E("  s_nop 3")
    E("  s_nop 7")
    E("  s_nop 7")
    E("  v_lshlrev_b32 v24, 4, v2")
    E("  v_lshl_add_u32 v24, v3, 11, v24")
    for q in range(2):
        E(f"  ds_write_b128 v24, v[{40+4*q}:{43+4*q}] offset:{1024*q}")
    E("  s_waitcnt lgkmcnt(0)")
    E("  s_barrier")
    E("  v_cmp_gt_u32 vcc, 32, v0")
    E("  s_and_saveexec_b64 s[40:41], vcc")
    E("  s_cbranch_execz k4_done")
    E("  v_lshlrev_b32 v24, 4, v0")
    for w in range(9):
        for q in range(2):
            E(f"  ds_read_b128 v[{64+8*w+4*q}:{67+8*w+4*q}], v24 offset:{2048*w+1024*q}")
    E("  v_lshlrev_b32 v25, 4, v5")
    E("  buffer_load_dwordx4 v[140:143], v25, s[32:35], 0 offen")
    E("  buffer_load_dwordx4 v[144:147], v25, s[32:35], 0 offen offset:32")
    E("  s_waitcnt vmcnt(0)")
    E("  s_movk_i32 s44, 1280")
    for i in range(4):
        E(f"  v_mul_lo_u32 v{148+i}, v{140+i}, s44")
        E(f"  v_lshl_add_u32 v{148+i}, v4, 2, v{148+i}")
        E(f"  v_add_u32 v{148+i}, s46, v{148+i}")
        E(f"  buffer_load_dword v{152+i}, v{148+i}, s[16:19], 0 offen")
        E(f"  buffer_load_dword v{156+i}, v{148+i}, s[20:23], 0 offen")
    E("  s_waitcnt lgkmcnt(0)")
    for w in range(1,9):
        for j in range(8):
            E(f"  v_add_f32 v{64+j}, v{64+j}, v{64+8*w+j}")
    for j in range(0,8,2):
        round_pair(64+j,65+j,160)
    for i in range(4):
        E(f"  v_mul_f32 v{64+i}, v{64+i}, v{144+i}")
        E(f"  v_mul_f32 v{68+i}, v{68+i}, v{144+i}")
    for j in range(0,8,2):
        round_pair(64+j,65+j,160)
    E("  s_waitcnt vmcnt(0)")
    for i in range(4):
        unpack(162,163,156+i)
        E(f"  v_add_f32 v{64+i}, v{64+i}, v162")
        E(f"  v_add_f32 v{68+i}, v{68+i}, v163")
        round_pair(64+i,68+i,160)
        unpack(162,163,152+i)
        E(f"  v_add_f32 v{64+i}, v{64+i}, v162")
        E(f"  v_add_f32 v{68+i}, v{68+i}, v163")
        E(f"  v_cvt_pk_bf16_f32 v{164+i}, v{64+i}, v{68+i}")
        E(f"  buffer_store_dword v{164+i}, v{148+i}, s[12:15], 0 offen")
    E("k4_done:")
    E("  s_endpgm")

VG={"k4_kernel":168}
def desc(name):
    E(f".amdhsa_kernel {name}")
    E(f"  .amdhsa_next_free_vgpr {VG.get(name,256)}")
    E("  .amdhsa_next_free_sgpr 102")
    E(f"  .amdhsa_accum_offset {VG.get(name,256)}")
    E("  .amdhsa_group_segment_fixed_size 0")
    E("  .amdhsa_kernarg_size 112")
    E("  .amdhsa_user_sgpr_count 2")
    E("  .amdhsa_user_sgpr_kernarg_segment_ptr 1")
    E("  .amdhsa_system_sgpr_workgroup_id_x 1")
    E(".end_amdhsa_kernel")

hdr=open(f"cdna_kernels/{NAME}.s.ref").read().split("; Override")[0]
E(hdr.rstrip())
E("; @launch kernel=k0_kernel grid=(320,1,1) block=(256,1,1) lds=9216")
E(f"; @launch kernel=k1_kernel grid=(640,1,1) block=(256,1,1) lds={K1_LDS}")
E("; @launch kernel=k2_kernel grid=(256,1,1) block=(320,1,1) lds=1024")
E("; @launch kernel=k3_kernel grid=(54,1,1) block=(256,1,1) lds=17408")
E("; @launch kernel=k4_kernel grid=(20,1,1) block=(576,1,1) lds=18432")
E('.amdgcn_target "amdgcn-amd-amdhsa--gfx950"')
E(".text")
k0(); k1(); k2(); k3(); k4()
E('.section .rodata,"a"')
for n in ["k0_kernel","k1_kernel","k2_kernel","k3_kernel","k4_kernel"]:
    E(".p2align 6")
    desc(n)
open(f"cdna_kernels/{NAME}.s","w").write("\n".join(out)+"\n")
```

```python
import sys
NAME="sequential_preLN__ssm_conv_h3__moe_arch_mod__prompt"
out=[]
def E(s=""):
    out.append(s)
WS_UT=0x000000; WS_ZT=0x300000; WS_H=0x600000; WS_LNH=0x900000
WS_R=0xC00000; WS_GU=0xC10000; WS_IDX=0xC20000
SZ=2048*640*2
UTS=4352

def srd(s, base, nbytes, off=0):
    if off:
        E(f"  s_add_u32 s{s}, s{base}, {hex(off)}")
        E(f"  s_addc_u32 s{s+1}, s{base+1}, 0")
    else:
        E(f"  s_mov_b32 s{s}, s{base}")
        E(f"  s_mov_b32 s{s+1}, s{base+1}")
    E(f"  s_mov_b32 s{s+2}, {hex(nbytes)}")
    E(f"  s_mov_b32 s{s+3}, 0x00020000")

STAMP=len(sys.argv)>1 and sys.argv[1]=="stamp"
KID={"k0_kernel":0,"k1_kernel":1,"k2_kernel":2,"k3_kernel":3,"k4_kernel":4}
cur=[None]
def stamp(i):
    if STAMP:
        E(f"  s_memrealtime s[98:99]")
        E(f"  s_waitcnt lgkmcnt(0)")
        E(f"  s_mov_b32 s{88+i}, s98")
def stamp_flush():
    if STAMP:
        stamp(7)
        E("  s_load_dwordx2 s[100:101], s[0:1], 104")
        E("  s_waitcnt lgkmcnt(0)")
        E(f"  s_add_u32 s84, s100, {hex(0xD00000+KID[cur[0]]*0x10000)}")
        E("  s_addc_u32 s85, s101, 0")
        E("  s_mov_b32 s86, 0x10000"); E("  s_mov_b32 s87, 0x20000")
        E("  s_mov_b64 exec, 1")
        E("  s_lshl_b32 s83, s2, 5")
        E("  v_mov_b32 v0, 0")
        for i in range(8):
            E(f"  v_mov_b32 v{2+i}, s{88+i}")
        E("  buffer_store_dwordx4 v[2:5], v0, s[84:87], s83 offen")
        E("  buffer_store_dwordx4 v[6:9], v0, s[84:87], s83 offen offset:16")
def kstart(name):
    cur[0]=name
    E(f".globl {name}")
    E(".p2align 8")
    E(f".type {name},@function")
    E(f"{name}:")
    if STAMP:
        for i in range(8): E(f"  s_mov_b32 s{88+i}, 0")
        stamp(0)

def unpack(lo, hi, src):
    E(f"  v_lshlrev_b32 v{lo}, 16, v{src}")
    E(f"  v_and_b32 v{hi}, 0xffff0000, v{src}")

WS_RPG=0x1000000; WS_RPU=0x1300000; WS_RPD=0x1600000
def repack():
    E("k0_repack:")
    E("  s_load_dwordx4 s[4:7], s[0:1], 64")
    E("  s_load_dwordx2 s[24:25], s[0:1], 80")
    E("  s_load_dwordx2 s[26:27], s[0:1], 104")
    E("  v_and_b32 v2, 63, v0")
    E("  v_lshrrev_b32 v3, 6, v0")
    E("  v_and_b32 v4, 15, v2")
    E("  v_lshrrev_b32 v5, 4, v2")
    E("  v_readfirstlane_b32 s40, v3")
    E("  v_lshlrev_b32 v9, 4, v2")
    E("  s_mov_b32 s44, 0x05040100")
    E("  s_mov_b32 s45, 0x07060302")
    E("  s_sub_u32 s28, s2, 320")
    E("  s_lshl_b32 s28, s28, 2")
    E("  s_add_u32 s28, s28, s40")
    E("  s_waitcnt lgkmcnt(0)")
    E("  s_cmp_ge_u32 s28, 1080")
    E("  s_cbranch_scc1 k0_rpd")
    E("  s_mov_b32 s29, 0x97B425F")
    E("  s_mul_hi_u32 s30, s28, s29")
    E("  s_mul_i32 s31, s30, 27")
    E("  s_sub_u32 s33, s28, s31")
    E("  s_cmp_ge_u32 s30, 20")
    E("  s_cselect_b32 s4, s6, s4")
    E("  s_cselect_b32 s5, s7, s5")
    E(f"  s_mov_b32 s29, {hex(WS_RPG)}")
    E(f"  s_cselect_b32 s29, {hex(WS_RPU)}, s29")
    E("  s_cselect_b32 s31, 20, 0")
    E("  s_sub_u32 s28, s30, s31")
    srd(8,4,640*1728*2)
    E("  s_add_u32 s12, s26, s29"); E("  s_addc_u32 s13, s27, 0"); E(f"  s_mov_b32 s14, {hex(54*20*2048)}"); E("  s_mov_b32 s15, 0x00020000")
    E("  s_lshl_b32 s31, s28, 5")
    E("  v_lshlrev_b32 v6, 3, v5")
    E("  v_add_u32 v6, s31, v6")
    E("  s_movk_i32 s32, 3456")
    E("  v_mul_lo_u32 v6, v6, s32")
    E("  v_lshl_add_u32 v6, v4, 3, v6")
    E("  s_lshl_b32 s34, s33, 7")
    for i in range(8):
        E(f"  s_add_u32 s36, s34, {3456*i}")
        E(f"  buffer_load_dwordx2 v[{10+2*i}:{11+2*i}], v6, s[8:11], s36 offen")
    E("  s_mul_i32 s37, s33, 81920")
    E("  s_lshl_b32 s35, s28, 11")
    E("  s_add_u32 s37, s37, s35")
    for j in range(1,4):
        E(f"  s_add_u32 s{37+j}, s37, {(j>>1)*40960+(j&1)*1024}")
    E("  s_branch k0_rpfin")
    E("k0_rpd:")
    E("  s_sub_u32 s28, s28, 1080")
    E("  s_mov_b32 s29, 0x1999999A")
    E("  s_mul_hi_u32 s30, s28, s29")
    E("  s_mul_i32 s31, s30, 10")
    E("  s_sub_u32 s33, s28, s31")
    srd(8,24,640*1728*2)
    srd(12,26,54*40*1024,WS_RPD)
    E("  s_lshr_b32 s31, s30, 1")
    E("  s_lshl_b32 s31, s31, 6")
    E("  s_and_b32 s32, s30, 1")
    E("  s_lshl_b32 s32, s32, 1")
    E("  s_add_u32 s31, s31, s32")
    E("  v_lshlrev_b32 v6, 4, v5")
    E("  v_add_u32 v6, s31, v6")
    E("  s_movk_i32 s32, 1280")
    E("  v_mul_lo_u32 v6, v6, s32")
    E("  v_lshl_add_u32 v6, v4, 3, v6")
    E("  s_lshl_b32 s34, s33, 7")
    for i in range(8):
        E(f"  s_add_u32 s36, s34, {(4*(i>>1)+(i&1))*1280}")
        E(f"  buffer_load_dwordx2 v[{10+2*i}:{11+2*i}], v6, s[8:11], s36 offen")
    E(f"  s_mul_i32 s37, s33, {4*54*1024}")
    E("  s_lshl_b32 s35, s30, 10")
    E("  s_add_u32 s37, s37, s35")
    for j in range(1,4):
        E(f"  s_add_u32 s{37+j}, s37, {j*54*1024}")
    E("k0_rpfin:")
    E("  s_waitcnt vmcnt(0)")
    for j in range(4):
        sel="s44" if j%2==0 else "s45"
        for q in range(4):
            E(f"  v_perm_b32 v{28+4*j+q}, v{10+2*(2*q+1)+(j>>1)}, v{10+2*(2*q)+(j>>1)}, {sel}")
        E(f"  buffer_store_dwordx4 v[{28+4*j}:{31+4*j}], v9, s[12:15], s{37+j} offen sc1")
    E("  s_endpgm")

def k0():
    kstart("k0_kernel")
    E("  s_cmp_ge_u32 s2, 725")
    E("  s_cbranch_scc1 k0_done")
    E("  s_cmp_ge_u32 s2, 320")
    E("  s_cbranch_scc1 k0_repack")
    E("  s_load_dwordx4 s[4:7], s[0:1], 8")
    E("  s_load_dwordx2 s[24:25], s[0:1], 24")
    E("  s_load_dwordx2 s[26:27], s[0:1], 104")
    E("  s_mov_b32 s28, 0x1999999A")
    E("  s_mul_hi_u32 s29, s2, s28")
    E("  s_mul_i32 s30, s29, 10")
    E("  s_sub_u32 s30, s2, s30")
    E("  v_and_b32 v1, 7, v0")
    E("  v_lshrrev_b32 v2, 3, v0")
    E("  s_lshl_b32 s31, s29, 6")
    E("  v_lshlrev_b32 v3, 1, v2")
    E("  v_add_u32 v3, s31, v3")
    E("  s_movk_i32 s33, 1280")
    E("  v_mul_lo_u32 v3, v3, s33")
    E("  s_lshl_b32 s32, s30, 7")
    E("  v_lshlrev_b32 v4, 4, v1")
    E("  v_add3_u32 v3, v3, s32, v4")
    for j in range(5):
        E(f"  v_add_u32 v{10+j}, {(j-3)*1280}, v3")
    E("  s_lshl_b32 s34, s30, 9")
    E("  v_lshlrev_b32 v5, 6, v1")
    E("  v_add_u32 v5, s34, v5")
    E("  s_waitcnt lgkmcnt(0)")
    srd(8,4,SZ); srd(12,6,SZ); srd(16,24,640*8); srd(20,26,640*UTS,WS_UT)
    for j in range(5):
        E(f"  buffer_load_dwordx4 v[{20+4*j}:{23+4*j}], v{10+j}, s[8:11], 0 offen")
    E("  buffer_load_dwordx4 v[40:43], v3, s[12:15], 0 offen")
    E("  buffer_load_dwordx4 v[44:47], v3, s[12:15], 0 offen offset:1280")
    for j in range(4):
        E(f"  buffer_load_dwordx4 v[{48+4*j}:{51+4*j}], v5, s[16:19], 0 offen offset:{16*j}")
    E("  v_lshrrev_b32 v6, 2, v2")
    E("  v_lshlrev_b32 v6, 2, v6")
    E("  v_and_b32 v7, 3, v2")
    E("  v_sub_u32 v7, 3, v7")
    E("  v_add_u32 v6, v6, v7")
    E("  v_lshlrev_b32 v6, 2, v6")
    E("  s_movk_i32 s35, 1152")
    E("  v_mul_lo_u32 v7, v1, s35")
    E("  v_add_u32 v6, v6, v7")
    E("  s_waitcnt vmcnt(0)")
    stamp(1)
    for c in range(8):
        unpack(64+4*c+0, 64+4*c+1, 48+2*c)
        unpack(64+4*c+2, 64+4*c+3, 49+2*c)
    for j in range(5):
        for d in range(4):
            unpack(96+8*j+2*d, 96+8*j+2*d+1, 20+4*j+d)
    for i in range(2):
        for d in range(4):
            unpack(136+8*i+2*d, 136+8*i+2*d+1, 40+4*i+d)
    for i in range(2):
        for d in range(4):
            c0=2*d; c1=2*d+1
            t=20
            for j in range(4):
                E(f"  v_mul_f32 v{t+2*j}, v{96+8*(i+j)+c0}, v{64+4*c0+3-j}")
                E(f"  v_mul_f32 v{t+2*j+1}, v{96+8*(i+j)+c1}, v{64+4*c1+3-j}")
            for j in range(4):
                E(f"  v_cvt_pk_bf16_f32 v{t+8+j}, v{t+2*j}, v{t+2*j+1}")
            for j in range(4):
                unpack(t+2*j, t+2*j+1, t+8+j)
            for j in range(1,4):
                E(f"  v_add_f32 v{t}, v{t}, v{t+2*j}")
                E(f"  v_add_f32 v{t+1}, v{t+1}, v{t+2*j+1}")
                E(f"  v_cvt_pk_bf16_f32 v{t+12}, v{t}, v{t+1}")
                unpack(t, t+1, t+12)
            E(f"  v_mul_f32 v{136+8*i+c0}, v{t}, v{136+8*i+c0}")
            E(f"  v_mul_f32 v{136+8*i+c1}, v{t+1}, v{136+8*i+c1}")
    for c in range(8):
        E(f"  v_cvt_pk_bf16_f32 v{40+c}, v{144+c}, v{136+c}")
    for c in range(8):
        E(f"  ds_write_b32 v6, v{40+c} offset:{144*c}")
    E("  s_waitcnt lgkmcnt(0)")
    E("  s_barrier")
    stamp(2)
    E("  v_lshrrev_b32 v8, 2, v0")
    E("  v_and_b32 v9, 3, v0")
    E("  s_movk_i32 s35, 144")
    E("  v_mul_lo_u32 v16, v8, s35")
    E("  v_lshl_add_u32 v16, v9, 4, v16")
    E("  ds_read_b128 v[48:51], v16")
    E("  ds_read_b128 v[52:55], v16 offset:64")
    E(f"  s_mul_i32 s36, s30, {64*UTS}")
    E("  s_lshl_b32 s37, s29, 7")
    E("  s_add_u32 s36, s36, s37")
    E(f"  s_movk_i32 s38, {UTS}")
    E("  v_mul_lo_u32 v17, v8, s38")
    E("  v_lshl_add_u32 v17, v9, 4, v17")
    E("  v_add_u32 v17, s36, v17")
    E("  s_waitcnt lgkmcnt(0)")
    E("  buffer_store_dwordx4 v[48:51], v17, s[20:23], 0 offen sc1")
    E("  buffer_store_dwordx4 v[52:55], v17, s[20:23], 0 offen offset:64 sc1")
    stamp_flush()
    E("k0_done:")
    E("  s_endpgm")
    repack()

HSTR=266*16
UB=8*HSTR
K1_LDS=UB+512+4096
def k1():
    kstart("k1_kernel")
    E("  s_cmp_ge_u32 s2, 640")
    E("  s_cbranch_scc1 k1_done")
    E("  s_load_dwordx4 s[4:7], s[0:1], 32")
    E("  s_load_dwordx2 s[26:27], s[0:1], 104")
    E("  s_and_b32 s3, s2, 7")
    E("  s_mul_i32 s3, s3, 80")
    E("  s_lshr_b32 s28, s2, 3")
    E("  s_add_u32 s3, s3, s28")
    E("  s_lshl_b32 s28, s3, 12")
    E("  v_lshlrev_b32 v1, 4, v0")
    E("  v_add_u32 v2, -32, v1")
    E("  v_add_u32 v3, -16, v1")
    E("  s_lshl_b32 s30, s3, 1")
    E("  v_mov_b32 v6, s30")
    E("  s_waitcnt lgkmcnt(0)")
    E("  s_add_u32 s8, s4, s28"); E("  s_addc_u32 s9, s5, 0"); E("  s_movk_i32 s10, 4096"); E("  s_mov_b32 s11, 0x00020000")
    E(f"  s_mul_i32 s29, s3, {UTS}")
    E(f"  s_add_u32 s29, s29, {hex(WS_UT)}")
    E("  s_add_u32 s12, s26, s29"); E("  s_addc_u32 s13, s27, 0"); E("  s_movk_i32 s14, 4096"); E("  s_mov_b32 s15, 0x00020000")
    srd(16,26,SZ,WS_ZT)
    srd(20,6,1280)
    E("  buffer_load_dwordx4 v[10:13], v2, s[8:11], 0 offen")
    E("  buffer_load_dwordx4 v[14:17], v3, s[8:11], 0 offen")
    E("  buffer_load_dwordx4 v[40:43], v1, s[12:15], 0 offen")
    E("  buffer_load_dwordx4 v[44:47], v1, s[8:11], 0 offen offset:4064")
    E("  buffer_load_dwordx4 v[48:51], v1, s[8:11], 0 offen offset:4080")
    E("  buffer_load_ushort v7, v6, s[20:23], 0 offen")
    def fill(wbase, addr, off):
        w=wbase
        for k in range(7):
            E(f"  v_alignbit_b32 v{20+k}, v{w+k+1}, v{w+k}, 16")
        for c in range(8):
            if c%2==0: src=w+c//2
            else: src=20+(c-1)//2
            if src%2==1:
                t=28+4*((c//2)%2)
                for q in range(4):
                    E(f"  v_mov_b32 v{t+q}, v{src+q}")
                src=t
            E(f"  ds_write_b128 v{addr}, v[{src}:{src+3}] offset:{c*HSTR+off}")
    E("  v_mov_b32 v36, 0"); E("  v_mov_b32 v37, 0"); E("  v_mov_b32 v38, 0"); E("  v_mov_b32 v39, 0")
    E("  v_cmp_gt_u32 vcc, 32, v0")
    E("  s_and_saveexec_b64 s[32:33], vcc")
    E(f"  ds_write_b128 v1, v[36:39] offset:{UB}")
    E("  s_mov_b64 exec, s[32:33]")
    E("  s_waitcnt vmcnt(4)")
    fill(10,1,0)
    E("  s_waitcnt vmcnt(3)")
    E(f"  ds_write_b128 v1, v[40:43] offset:{UB+512}")
    E("  s_waitcnt vmcnt(1)")
    E("  v_cmp_gt_u32 vcc, 2, v0")
    E("  s_and_saveexec_b64 s[32:33], vcc")
    fill(44,1,4096)
    E("  s_mov_b64 exec, s[32:33]")
    E("  v_and_b32 v50, 63, v0")
    E("  v_lshrrev_b32 v51, 6, v0")
    E("  v_and_b32 v52, 15, v50")
    E("  v_lshrrev_b32 v53, 4, v50")
    E("  v_add_u32 v54, 1, v52")
    E("  v_and_b32 v55, 7, v54")
    E(f"  s_movk_i32 s34, {HSTR}")
    E("  v_mul_lo_u32 v55, v55, s34")
    E("  v_lshrrev_b32 v54, 3, v54")
    E("  v_sub_u32 v54, v54, v53")
    E("  v_add_u32 v54, 3, v54")
    E("  v_lshl_add_u32 v55, v54, 4, v55")
    E("  v_lshl_add_u32 v55, v51, 7, v55")
    E("  v_lshlrev_b32 v56, 5, v52")
    E("  v_lshl_add_u32 v56, v53, 4, v56")
    E(f"  v_add_u32 v56, {UB+512-32}, v56")
    E("  v_lshlrev_b32 v57, 7, v51")
    E("  v_sub_u32 v56, v56, v57")
    for i in range(32):
        E(f"  v_mov_b32 v{64+i}, 0")
    E("  s_mov_b32 s44, 2")
    E("  s_waitcnt vmcnt(0) lgkmcnt(0)")
    E("  s_barrier")
    stamp(1)
    E("k1_loop:")
    for k in range(8):
        E(f"  ds_read_b128 v[{100+4*k}:{103+4*k}], v56 offset:{512*k}")
    for pp in range(8):
        E(f"  ds_read_b128 v[{132+4*pp}:{135+4*pp}], v55 offset:{8*pp*64}")
    E("  v_add_u32 v55, 64, v55")
    E("  v_add_u32 v56, -64, v56")
    for pp in range(8):
        E(f"  s_waitcnt lgkmcnt({7-pp})")
        for i in range(pp,8):
            E(f"  v_mfma_f32_16x16x32_bf16 v[{64+4*i}:{67+4*i}], v[{132+4*pp}:{135+4*pp}], v[{100+4*(i-pp)}:{103+4*(i-pp)}], v[{64+4*i}:{67+4*i}]")
    E("  s_sub_u32 s44, s44, 1")
    E("  s_cmp_lg_u32 s44, 0")
    E("  s_cbranch_scc1 k1_loop")
    E("  s_nop 7")
    E("  s_barrier")
    stamp(2)
    E("  v_lshlrev_b32 v58, 4, v50")
    E("  v_lshl_add_u32 v58, v51, 13, v58")
    for i in range(8):
        E(f"  ds_write_b128 v58, v[{64+4*i}:{67+4*i}] offset:{1024*i}")
    E("  v_lshlrev_b32 v58, 4, v50")
    E("  v_lshl_add_u32 v58, v51, 11, v58")
    E("  v_lshlrev_b32 v59, 1, v52")
    E("  v_lshrrev_b32 v60, 1, v53")
    E("  v_add_u32 v59, v59, v60")
    E("  v_lshl_add_u32 v62, v51, 6, v59")
    E("  v_lshlrev_b32 v59, 4, v62")
    E("  v_and_b32 v63, 1, v53")
    E("  v_sub_u32 v60, 1, v63")
    E("  v_lshl_add_u32 v59, v60, 3, v59")
    E(f"  ds_read_b64 v[140:141], v59 offset:{UB+512}")
    E(f"  ds_read_b64 v[142:143], v59 offset:{UB+512+512}")
    E("  v_lshlrev_b32 v61, 16, v7")
    E("  s_movk_i32 s34, 10240")
    E("  v_mul_lo_u32 v62, v62, s34")
    E("  v_lshl_add_u32 v62, v63, 3, v62")
    E("  s_lshl_b32 s35, s3, 4")
    E("  v_add_u32 v62, s35, v62")
    E(f"  s_mov_b32 s36, {32*10240}")
    E("  s_waitcnt lgkmcnt(0)")
    E("  s_barrier")
    for tt in range(2):
        for ww in range(4):
            E(f"  ds_read_b128 v[{100+16*tt+4*ww}:{103+16*tt+4*ww}], v58 offset:{ww*8192+tt*1024}")
    for tt in range(2):
        b=100+16*tt
        E(f"  s_waitcnt lgkmcnt({4-4*tt})")
        for q in range(4):
            E(f"  v_add_f32 v{b+q}, v{b+q}, v{b+4+q}")
            E(f"  v_add_f32 v{b+8+q}, v{b+8+q}, v{b+12+q}")
        for q in range(4):
            E(f"  v_add_f32 v{b+q}, v{b+q}, v{b+8+q}")
        E(f"  v_cvt_pk_bf16_f32 v150, v{b}, v{b+1}")
        E(f"  v_cvt_pk_bf16_f32 v151, v{b+2}, v{b+3}")
        unpack(b, b+1, 150); unpack(b+2, b+3, 151)
        uA=140+2*tt; uB=141+2*tt
        unpack(155,154,uA)
        unpack(153,152,uB)
        for q in range(4):
            E(f"  v_mul_f32 v{152+q}, v{152+q}, v61")
        E("  v_cvt_pk_bf16_f32 v150, v152, v153")
        E("  v_cvt_pk_bf16_f32 v151, v154, v155")
        unpack(152,153,150); unpack(154,155,151)
        for q in range(4):
            E(f"  v_add_f32 v{b+q}, v{b+q}, v{152+q}")
        E(f"  v_cvt_pk_bf16_f32 v{156+2*tt}, v{b}, v{b+1}")
        E(f"  v_cvt_pk_bf16_f32 v{157+2*tt}, v{b+2}, v{b+3}")
        E(f"  buffer_store_dwordx2 v[{156+2*tt}:{157+2*tt}], v62, s[16:19], {'s36' if tt else '0'} offen")
    stamp_flush()
    E("k1_done:")
    E("  s_endpgm")

def round_pair(a,b,tmp):
    E(f"  v_cvt_pk_bf16_f32 v{tmp}, v{a}, v{b}")
    unpack(a,b,tmp)

def wave_sum(r, sdst):
    for ctl in ["row_shr:1","row_shr:2","row_shr:4","row_shr:8"]:
        E("  s_nop 1")
        E(f"  v_add_f32_dpp v{r}, v{r}, v{r} {ctl} row_mask:0xf bank_mask:0xf bound_ctrl:0")
    E("  s_nop 1")
    E(f"  v_add_f32_dpp v{r}, v{r}, v{r} row_bcast:15 row_mask:0xa bank_mask:0xf")
    E("  s_nop 1")
    E(f"  v_add_f32_dpp v{r}, v{r}, v{r} row_bcast:31 row_mask:0xc bank_mask:0xf")
    E("  s_nop 0")
    E(f"  v_readlane_b32 s{sdst}, v{r}, 63")
    E("  s_nop 1")

def layernorm(X, O):
    E(f"  v_add_f32 v60, v{X}, v{X+1}")
    E(f"  v_add_f32 v61, v{X+2}, v{X+3}")
    E(f"  v_add_f32 v62, v{X+4}, v{X+5}")
    E(f"  v_add_f32 v63, v{X+6}, v{X+7}")
    E(f"  v_add_f32 v64, v{X+8}, v{X+9}")
    E("  v_add_f32 v60, v60, v61"); E("  v_add_f32 v62, v62, v63")
    E("  v_add_f32 v60, v60, v64"); E("  v_add_f32 v60, v60, v62")
    wave_sum(60,50)
    E("  v_mov_b32 v61, s44")
    E("  v_mul_f32 v61, s50, v61")
    for i in range(10):
        E(f"  v_sub_f32 v{64+i}, v{X+i}, v61")
    E("  v_mul_f32 v60, v64, v64"); E("  v_mul_f32 v62, v65, v65")
    for i in range(2,10,2):
        E(f"  v_fmac_f32 v60, v{64+i}, v{64+i}")
        E(f"  v_fmac_f32 v62, v{65+i}, v{65+i}")
    E("  v_add_f32 v60, v60, v62")
    wave_sum(60,51)
    E("  v_mov_b32 v62, s44")
    E("  v_mul_f32 v62, s51, v62")
    E("  v_cvt_pk_bf16_f32 v63, v61, v62")
    unpack(61,62,63)
    E("  v_add_f32 v62, s45, v62")
    E("  v_cvt_pk_bf16_f32 v63, v62, v62")
    E("  v_lshlrev_b32 v62, 16, v63")
    E("  v_sqrt_f32 v62, v62")
    E("  s_nop 0")
    E("  v_cvt_pk_bf16_f32 v63, v62, v62")
    E("  v_lshlrev_b32 v62, 16, v63")
    E("  v_rcp_f32 v62, v62")
    for i in range(10):
        E(f"  v_sub_f32 v{64+i}, v{X+i}, v61")
    for i in range(0,10,2):
        round_pair(64+i,65+i,63)
    for i in range(10):
        E(f"  v_mul_f32 v{O+i}, v{64+i}, v62")
    for i in range(0,10,2):
        round_pair(O+i,O+i+1,63)

def k2():
    kstart("k2_kernel")
    E("  s_cmp_ge_u32 s2, 512")
    E("  s_cbranch_scc1 k2_done")
    E("  s_load_dwordx2 s[4:5], s[0:1], 0")
    E("  s_load_dwordx2 s[6:7], s[0:1], 56")
    E("  s_load_dwordx2 s[24:25], s[0:1], 88")
    E("  s_load_dwordx2 s[26:27], s[0:1], 104")
    E("  v_lshrrev_b32 v2, 6, v0")
    E("  v_and_b32 v3, 63, v0")
    E("  s_nop 0")
    E("  v_readfirstlane_b32 s46, v2")
    E("  s_lshl_b32 s47, s2, 2")
    E("  s_add_u32 s46, s46, s47")
    E("  s_mul_i32 s47, s46, 1280")
    E("  s_lshr_b32 s48, s46, 3")
    E("  s_mul_i32 s48, s48, 10240")
    E("  s_and_b32 s49, s46, 7")
    E("  s_lshl_b32 s49, s49, 1")
    E("  s_add_u32 s48, s48, s49")
    E("  s_mov_b32 s44, 0x3acccccd")
    E("  s_mov_b32 s45, 0x3727c5ac")
    E("  v_lshlrev_b32 v1, 2, v3")
    E("  v_lshlrev_b32 v4, 5, v3")
    E("  s_waitcnt lgkmcnt(0)")
    srd(8,4,SZ); srd(12,6,1280); srd(16,24,SZ); srd(20,26,SZ,WS_ZT)
    srd(28,26,SZ,WS_H); srd(32,26,SZ,WS_LNH); srd(36,26,8192,WS_R)
    for j in range(5):
        E(f"  buffer_load_dword v{10+j}, v1, s[8:11], s47 offen offset:{256*j}")
    for j in range(5):
        E(f"  buffer_load_ushort v{40+2*j}, v4, s[20:23], s48 offen offset:{2048*j if j<2 else 0}" if j<2 else
          f"  buffer_load_ushort v{40+2*j}, v5, s[20:23], s48 offen offset:{2048*(j-2)}" if j<4 else
          f"  buffer_load_ushort v{40+2*j}, v6, s[20:23], s48 offen")
        E(f"  buffer_load_ushort v{41+2*j}, v4, s[20:23], s48 offen offset:{2048*j+16}" if j<2 else
          f"  buffer_load_ushort v{41+2*j}, v5, s[20:23], s48 offen offset:{2048*(j-2)+16}" if j<4 else
          f"  buffer_load_ushort v{41+2*j}, v6, s[20:23], s48 offen offset:16")
        if j==1:
            E("  v_add_u32 v5, 4096, v4")
            E("  v_add_u32 v6, 8192, v4")
    for j in range(5):
        E(f"  buffer_load_dword v{15+j}, v1, s[12:15], 0 offen offset:{256*j}")
    E("  s_waitcnt vmcnt(15)")
    stamp(1)
    for j in range(5):
        unpack(20+2*j,21+2*j,10+j)
    layernorm(20,30)
    E("  s_waitcnt vmcnt(5)")
    stamp(2)
    for i in range(10):
        E(f"  v_lshlrev_b32 v{40+i}, 16, v{40+i}")
    for i in range(10):
        E(f"  v_mul_f32 v{40+i}, v{30+i}, v{40+i}")
    for i in range(0,10,2):
        round_pair(40+i,41+i,63)
    for i in range(10):
        E(f"  v_add_f32 v{40+i}, v{20+i}, v{40+i}")
    for j in range(5):
        E(f"  v_cvt_pk_bf16_f32 v{10+j}, v{40+2*j}, v{41+2*j}")
        unpack(40+2*j,41+2*j,10+j)
    for j in range(5):
        E(f"  buffer_store_dword v{10+j}, v1, s[28:31], s47 offen offset:{256*j} sc1")
    layernorm(40,30)
    for j in range(5):
        E(f"  v_cvt_pk_bf16_f32 v{80+j}, v{30+2*j}, v{31+2*j}")
    for j in range(5):
        E(f"  buffer_store_dword v{80+j}, v1, s[32:35], s47 offen offset:{256*j} sc1")
    for i in range(10):
        E(f"  v_add_f32 v{20+i}, v{40+i}, v{30+i}")
    for j in range(5):
        E(f"  v_cvt_pk_bf16_f32 v{85+j}, v{20+2*j}, v{21+2*j}")
    for j in range(5):
        E(f"  buffer_store_dword v{85+j}, v1, s[16:19], s47 offen offset:{256*j} sc1")
    E("  s_waitcnt vmcnt(15)")
    for j in range(5):
        unpack(64+2*j,65+2*j,15+j)
    E("  v_mul_f32 v60, v30, v64"); E("  v_mul_f32 v61, v31, v65")
    for i in range(2,10,2):
        E(f"  v_fmac_f32 v60, v{30+i}, v{64+i}")
        E(f"  v_fmac_f32 v61, v{31+i}, v{65+i}")
    E("  v_add_f32 v60, v60, v61")
    wave_sum(60,57)
    E("  v_mov_b32 v60, s57")
    E("  v_cvt_pk_bf16_f32 v60, v60, v60")
    E("  v_lshlrev_b32 v60, 16, v60")
    E("  s_lshl_b32 s49, s46, 2")
    E("  v_mov_b32 v7, 0")
    E("  v_cmp_eq_u32 vcc, 0, v3")
    E("  s_and_saveexec_b64 s[40:41], vcc")
    E("  buffer_store_dword v60, v7, s[36:39], s49 offen")
    stamp_flush()
    E("k2_done:")
    E("  s_endpgm")

def topk():
    E("  v_mov_b32 v30, 0")
    for rnd in range(8):
        E("  v_max3_u32 v20, v10, v11, v12")
        E("  v_max3_u32 v21, v13, v14, v15")
        E("  v_max3_u32 v20, v20, v16, v17")
        E("  v_max_u32 v20, v20, v21")
        E("  s_nop 1")
        for ctl in ["row_shr:1","row_shr:2","row_shr:4","row_shr:8"]:
            E(f"  v_max_u32_dpp v20, v20, v20 {ctl} row_mask:0xf bank_mask:0xf bound_ctrl:0")
            E("  s_nop 1")
        E("  v_max_u32_dpp v20, v20, v20 row_bcast:15 row_mask:0xa bank_mask:0xf")
        E("  s_nop 1")
        E("  v_max_u32_dpp v20, v20, v20 row_bcast:31 row_mask:0xc bank_mask:0xf")
        E("  s_nop 1")
        E("  v_readlane_b32 s50, v20, 63")
        E("  s_nop 3")
        E(f"  v_writelane_b32 v30, s50, {rnd}")
        for i in range(8):
            E(f"  v_cmp_ne_u32 vcc, s50, v{10+i}")
            E("  s_nop 1")
            E(f"  v_cndmask_b32 v{10+i}, 0, v{10+i}, vcc")
    E("  v_and_b32 v31, 63, v0")
    E("  v_lshrrev_b32 v32, 6, v0")
    E("  v_lshlrev_b32 v33, 3, v32")
    E("  v_add_u32 v33, v33, v31")
    E("  v_lshlrev_b32 v33, 2, v33")
    E("  v_cmp_gt_u32 s[42:43], 8, v31")
    E("  v_cmp_gt_u32 vcc, 256, v0")
    E("  s_nop 1")
    E("  s_and_b64 vcc, vcc, s[42:43]")
    E("  s_and_saveexec_b64 s[40:41], vcc")
    E(f"  ds_write_b32 v33, v30 offset:{TK_OFF}")
    E("  s_mov_b64 exec, s[40:41]")
    E("  s_waitcnt lgkmcnt(0)")
    E("  s_barrier")
    E("  v_and_b32 v34, 31, v0")
    E("  v_lshlrev_b32 v34, 2, v34")
    E(f"  ds_read_b32 v35, v34 offset:{TK_OFF}")
    E("  v_mov_b32 v36, 0")
    for q in range(8):
        E(f"  ds_read_b128 v[{40+4*q}:{43+4*q}], v36 offset:{TK_OFF+16*q}")
    E("  s_waitcnt lgkmcnt(0)")
    E("  v_mov_b32 v37, 0")
    for q in range(32):
        E(f"  v_cmp_gt_u32 vcc, v{40+q}, v35")
        E(f"  v_addc_co_u32 v37, vcc, 0, v37, vcc")
    E("  v_cmp_gt_u32 s[42:43], 8, v37")
    E("  v_cmp_gt_u32 vcc, 32, v0")
    E("  s_nop 1")
    E("  s_and_b64 vcc, vcc, s[42:43]")
    E("  s_and_saveexec_b64 s[40:41], vcc")
    E("  v_lshlrev_b32 v38, 2, v37")
    E(f"  ds_write_b32 v38, v35 offset:{TK_OFF+128}")
    E("  s_mov_b64 exec, s[40:41]")
    E("  s_waitcnt lgkmcnt(0)")
    E("  s_barrier")

TK_OFF=16384
GU_OFF=16384+512
FL_OFF=16384+1024
WS_ACC=0xC30000
NREP=4
def k3():
    kstart("k3_kernel")
    E("  s_cmp_ge_u32 s2, 54")
    E("  s_cbranch_scc1 k3_done")
    E("  s_load_dwordx4 s[4:7], s[0:1], 64")
    E("  s_load_dwordx4 s[24:27], s[0:1], 80")
    E("  s_load_dwordx4 s[52:55], s[0:1], 96")
    E("  v_and_b32 v1, 255, v0")
    E("  v_lshlrev_b32 v1, 5, v1")
    E("  v_and_b32 v2, 63, v0")
    E("  v_lshrrev_b32 v3, 6, v0")
    E("  v_and_b32 v4, 15, v2")
    E("  v_lshrrev_b32 v5, 4, v2")
    E("  v_readfirstlane_b32 s68, v3")
    E("  v_and_b32 v6, 3, v3")
    E("  s_movk_i32 s44, 160")
    E("  v_mul_lo_u32 v6, v6, s44")
    E("  v_lshl_add_u32 v6, v5, 3, v6")
    E("  v_lshlrev_b32 v7, 4, v2")
    E("  s_and_b32 s45, s68, 3")
    E("  s_mul_i32 s45, s45, 10240")
    E("  s_mul_i32 s46, s2, 40960")
    E("  s_add_u32 s45, s45, s46")
    E(f"  s_mul_i32 s48, s2, {54*1024}")
    E("  s_lshl_b32 s49, s68, 10")
    E("  s_add_u32 s48, s48, s49")
    E("  s_waitcnt lgkmcnt(0)")
    E("  s_cmp_ge_u32 s68, 4")
    E(f"  s_mov_b32 s49, {hex(WS_RPG)}")
    E(f"  s_cselect_b32 s49, {hex(WS_RPU)}, s49")
    E("  s_add_u32 s8, s54, s49"); E("  s_addc_u32 s9, s55, 0"); E(f"  s_mov_b32 s10, {hex(54*20*2048)}"); E("  s_mov_b32 s11, 0x00020000")
    srd(16,54,8192,WS_R); srd(20,54,SZ,WS_LNH)
    srd(28,54,54*40*1024,WS_RPD); srd(32,54,54*512,WS_GU); srd(56,54,SZ,WS_H); srd(60,26,SZ); srd(64,52,256)
    E("  buffer_load_dwordx4 v[10:13], v1, s[16:19], 0 offen")
    E("  buffer_load_dwordx4 v[14:17], v1, s[16:19], 0 offen offset:16")
    for f in range(10):
        E(f"  s_add_u32 s47, s45, {1024*f}")
        E(f"  buffer_load_dwordx4 v[{96+4*f}:{99+4*f}], v7, s[8:11], s47 offen")
    for q in range(7):
        E(f"  s_add_u32 s47, s48, {8192*q}")
        E(f"  buffer_load_dwordx4 v[{136+4*q}:{139+4*q}], v7, s[28:31], s47 offen")
    E("  s_waitcnt vmcnt(17)")
    stamp(1)
    for i in range(8):
        E(f"  v_ashrrev_i32 v20, 31, v{10+i}")
        E(f"  v_or_b32 v20, 0x80000000, v20")
        E(f"  v_xor_b32 v{10+i}, v{10+i}, v20")
        E(f"  v_and_b32 v{10+i}, 0xffff0000, v{10+i}")
        E(f"  v_lshlrev_b32 v21, 3, v0")
        E(f"  v_sub_u32 v21, {0xFFFF-i}, v21")
        E(f"  v_or_b32 v{10+i}, v{10+i}, v21")
    topk()
    stamp(2)
    E("  v_and_b32 v8, 7, v4")
    E("  v_lshlrev_b32 v8, 2, v8")
    E(f"  ds_read_b32 v9, v8 offset:{TK_OFF+128}")
    E("  s_waitcnt lgkmcnt(0)")
    E("  v_and_b32 v18, 0xffff, v9")
    E("  v_sub_u32 v18, 0xffff, v18")
    E("  s_movk_i32 s44, 1280")
    E("  v_mul_lo_u32 v19, v18, s44")
    E("  v_lshl_add_u32 v19, v6, 1, v19")
    for ks in range(5):
        E(f"  buffer_load_dwordx4 v[{176+4*ks}:{179+4*ks}], v19, s[20:23], 0 offen offset:{64*ks}")
    for i in range(8):
        E(f"  v_mov_b32 v{40+i}, 0")
    E("  s_waitcnt vmcnt(0)")
    stamp(3)
    for ks in range(5):
        for par in range(2):
            E(f"  v_mfma_f32_16x16x32_bf16 v[{40+4*par}:{43+4*par}], v[{176+4*ks}:{179+4*ks}], v[{96+8*ks+4*par}:{99+8*ks+4*par}], v[{40+4*par}:{43+4*par}]")
    E("  s_nop 7")
    E("  v_lshlrev_b32 v24, 4, v2")
    E("  v_lshl_add_u32 v24, v3, 11, v24")
    for q in range(2):
        E(f"  ds_write_b128 v24, v[{40+4*q}:{43+4*q}] offset:{1024*q}")
    E("  s_waitcnt lgkmcnt(0)")
    E("  s_barrier")
    stamp(4)
    E("  v_cmp_gt_u32 vcc, 32, v0")
    E("  s_and_saveexec_b64 s[40:41], vcc")
    E("  s_cbranch_execz k3_skipgu")
    E("  v_lshlrev_b32 v24, 4, v0")
    for w in range(8):
        for q in range(2):
            E(f"  ds_read_b128 v[{64+8*w+4*q}:{67+8*w+4*q}], v24 offset:{2048*w+1024*q}")
    E("  s_waitcnt lgkmcnt(0)")
    for j in range(8):
        E(f"  v_add_f32 v{64+j}, v{64+j}, v{72+j}")
        E(f"  v_add_f32 v{80+j}, v{80+j}, v{88+j}")
        E(f"  v_add_f32 v{96+j}, v{96+j}, v{104+j}")
        E(f"  v_add_f32 v{112+j}, v{112+j}, v{120+j}")
    for j in range(8):
        E(f"  v_add_f32 v{64+j}, v{64+j}, v{80+j}")
        E(f"  v_add_f32 v{72+j}, v{96+j}, v{112+j}")
    for j in range(0,16,2):
        round_pair(64+j,65+j,130)
    for j in range(8):
        E(f"  v_mul_f32 v{80+j}, 0xbfb8aa3b, v{64+j}")
    for j in range(8):
        E(f"  v_exp_f32 v{80+j}, v{80+j}")
    E("  s_nop 0")
    for j in range(8):
        E(f"  v_add_f32 v{80+j}, 1.0, v{80+j}")
    for j in range(8):
        E(f"  v_rcp_f32 v{80+j}, v{80+j}")
    E("  s_nop 0")
    for j in range(8):
        E(f"  v_mul_f32 v{80+j}, v{64+j}, v{80+j}")
    for j in range(0,8,2):
        round_pair(80+j,81+j,130)
    for j in range(8):
        E(f"  v_mul_f32 v{80+j}, v{80+j}, v{72+j}")
    E("  v_lshlrev_b32 v25, 8, v5")
    E("  v_lshl_add_u32 v25, v4, 2, v25")
    E("  s_lshl_b32 s47, s2, 9")
    for i in range(4):
        E(f"  v_cvt_pk_bf16_f32 v{90+i}, v{80+i}, v{84+i}")
        E(f"  buffer_store_dword v{90+i}, v25, s[32:35], s47 offen offset:{64*i} sc1")
    E("  s_waitcnt vmcnt(0)")
    E("  v_cmp_eq_u32 vcc, 0, v0")
    E("  s_and_saveexec_b64 s[42:43], vcc")
    E("  v_mov_b32 v28, 1")
    E("  v_mov_b32 v29, 0")
    E("  buffer_atomic_add v28, v29, s[64:67], 0 offen")
    E("  s_cmp_ge_u32 s2, 40")
    E("  s_cbranch_scc1 k3_skipgu")
    E("k3_poll:")
    E("  buffer_load_dword v28, v29, s[64:67], 0 offen sc1")
    E("  s_waitcnt vmcnt(0)")
    E("  v_readfirstlane_b32 s47, v28")
    E("  s_nop 3")
    E("  s_cmp_ge_u32 s47, 54")
    E("  s_cbranch_scc1 k3_skipgu")
    E("  s_sleep 1")
    E("  s_branch k3_poll")
    E("k3_skipgu:")
    E("  s_mov_b64 exec, s[40:41]")
    E("  s_cmp_ge_u32 s2, 40")
    E("  s_cbranch_scc1 k3_fin")
    E("  s_barrier")
    stamp(5)
    E("  v_and_b32 v8, 7, v4")
    E("  v_lshlrev_b32 v8, 6, v8")
    E("  v_lshl_add_u32 v8, v5, 4, v8")
    E("  s_lshl_b32 s47, s68, 9")
    for q in range(7):
        E(f"  buffer_load_dwordx4 v[{96+4*q}:{99+4*q}], v8, s[32:35], s47 offen offset:0 sc1")
        if q<6: E("  s_add_u32 s47, s47, 4096")
    for i in range(4):
        E(f"  v_mov_b32 v{40+i}, 0")
    for q in range(7):
        E(f"  s_waitcnt vmcnt({6-q})")
        E(f"  v_mfma_f32_16x16x32_bf16 v[40:43], v[{96+4*q}:{99+4*q}], v[{136+4*q}:{139+4*q}], v[40:43]")
    E("  s_nop 7")
    E("  v_lshlrev_b32 v24, 4, v2")
    E("  v_lshl_add_u32 v24, v3, 10, v24")
    E("  ds_write_b128 v24, v[40:43]")
    E("  s_waitcnt lgkmcnt(0)")
    E("  s_barrier")
    stamp(6)
    E("  v_cmp_gt_u32 vcc, 32, v0")
    E("  s_and_saveexec_b64 s[40:41], vcc")
    E("  s_cbranch_execz k3_fin")
    E("  v_lshlrev_b32 v24, 4, v0")
    for w in range(8):
        E(f"  ds_read_b128 v[{96+4*w}:{99+4*w}], v24 offset:{1024*w}")
    E("  v_lshlrev_b32 v31, 4, v5")
    E(f"  ds_read_b128 v[44:47], v31 offset:{TK_OFF+128}")
    E("  s_waitcnt lgkmcnt(0)")
    E("  s_lshr_b32 s47, s2, 2")
    E("  s_lshl_b32 s47, s47, 6")
    E("  s_and_b32 s48, s2, 3")
    E("  s_add_u32 s47, s47, s48")
    E("  s_lshl_b32 s47, s47, 1")
    E("  s_movk_i32 s44, 1280")
    for i in range(4):
        E(f"  v_and_b32 v{48+i}, 0xffff, v{44+i}")
        E(f"  v_sub_u32 v{48+i}, 0xffff, v{48+i}")
        E(f"  v_mul_lo_u32 v{48+i}, v{48+i}, s44")
        E(f"  v_lshl_add_u32 v{48+i}, v4, 3, v{48+i}")
        E(f"  buffer_load_ushort v{52+i}, v{48+i}, s[56:59], s47 offen")
        E(f"  buffer_load_ushort v{56+i}, v{48+i}, s[20:23], s47 offen")
    for i in range(4):
        E(f"  v_and_b32 v20, 0xffff0000, v{44+i}")
        E("  v_ashrrev_i32 v21, 31, v20")
        E("  v_not_b32 v21, v21")
        E("  v_or_b32 v21, 0x80000000, v21")
        E("  v_xor_b32 v20, v20, v21")
        E("  v_and_b32 v20, 0xffff0000, v20")
        E(f"  v_mul_f32 v{60+i}, 0xbfb8aa3b, v20")
    for i in range(4):
        E(f"  v_exp_f32 v{60+i}, v{60+i}")
    E("  s_nop 0")
    for i in range(4):
        E(f"  v_add_f32 v{60+i}, 1.0, v{60+i}")
    for i in range(4):
        E(f"  v_rcp_f32 v{60+i}, v{60+i}")
    E("  s_nop 0")
    round_pair(60,61,64); round_pair(62,63,64)
    for w in range(1,8):
        for i in range(4):
            E(f"  v_add_f32 v{96+i}, v{96+i}, v{96+4*w+i}")
    round_pair(96,97,64); round_pair(98,99,64)
    for i in range(4):
        E(f"  v_mul_f32 v{96+i}, v{96+i}, v{60+i}")
    round_pair(96,97,64); round_pair(98,99,64)
    E("  s_waitcnt vmcnt(0)")
    for i in range(4):
        E(f"  v_lshlrev_b32 v{56+i}, 16, v{56+i}")
        E(f"  v_lshlrev_b32 v{52+i}, 16, v{52+i}")
        E(f"  v_add_f32 v{96+i}, v{96+i}, v{56+i}")
    round_pair(96,97,64); round_pair(98,99,64)
    for i in range(4):
        E(f"  v_add_f32 v{96+i}, v{96+i}, v{52+i}")
        E(f"  v_cvt_pk_bf16_f32 v{96+i}, v{96+i}, v{96+i}")
        E(f"  buffer_store_short v{96+i}, v{48+i}, s[60:63], s47 offen")
    E("k3_fin:")
    stamp_flush()
    E("k3_done:")
    E("  s_endpgm")

VG={"k0_kernel":152,"k4_kernel":168,"k1_kernel":168,"k2_kernel":96}
def desc(name):
    E(f".amdhsa_kernel {name}")
    E(f"  .amdhsa_next_free_vgpr {VG.get(name,256)}")
    E("  .amdhsa_next_free_sgpr 102")
    E(f"  .amdhsa_accum_offset {VG.get(name,256)}")
    E("  .amdhsa_group_segment_fixed_size 0")
    E("  .amdhsa_kernarg_size 112")
    E("  .amdhsa_user_sgpr_count 2")
    E("  .amdhsa_user_sgpr_kernarg_segment_ptr 1")
    E("  .amdhsa_system_sgpr_workgroup_id_x 1")
    E(".end_amdhsa_kernel")

hdr=open(f"cdna_kernels/{NAME}.s.ref").read().split("; Override")[0]
E(hdr.rstrip())
E("; @launch kernel=k0_kernel grid=(725,1,1) block=(256,1,1) lds=9216")
E(f"; @launch kernel=k1_kernel grid=(640,1,1) block=(256,1,1) lds={K1_LDS}")
E("; @launch kernel=k2_kernel grid=(512,1,1) block=(256,1,1) lds=0")
E("; @launch kernel=k3_kernel grid=(54,1,1) block=(512,1,1) lds=17920")
E('.amdgcn_target "amdgcn-amd-amdhsa--gfx950"')
E(".text")
k0(); k1(); k2(); k3()
E('.section .rodata,"a"')
for n in ["k0_kernel","k1_kernel","k2_kernel","k3_kernel"]:
    E(".p2align 6")
    desc(n)
open("stamp.s" if STAMP else f"cdna_kernels/{NAME}.s","w").write("\n".join(out)+"\n")
```

```python
import sys
NAME="sequential_preLN__ssm_conv_h3__moe_arch_mod__prompt"
out=[]
def E(s=""):
    out.append(s)
WS_UT=0x000000; WS_ZT=0x300000; WS_H=0x600000; WS_LNH=0x900000
WS_R=0xC00000; WS_GU=0xC10000; WS_IDX=0xC20000
SZ=2048*640*2
UTS=4352

def srd(s, base, nbytes, off=0):
    if off:
        E(f"  s_add_u32 s{s}, s{base}, {hex(off)}")
        E(f"  s_addc_u32 s{s+1}, s{base+1}, 0")
    else:
        E(f"  s_mov_b32 s{s}, s{base}")
        E(f"  s_mov_b32 s{s+1}, s{base+1}")
    E(f"  s_mov_b32 s{s+2}, {hex(nbytes)}")
    E(f"  s_mov_b32 s{s+3}, 0x00020000")

STAMP=len(sys.argv)>1 and sys.argv[1]=="stamp"
KID={"k0_kernel":0,"k1_kernel":1,"k2_kernel":2,"k3_kernel":3,"k4_kernel":4}
cur=[None]
def stamp(i):
    if STAMP:
        E(f"  s_memrealtime s[98:99]")
        E(f"  s_waitcnt lgkmcnt(0)")
        E(f"  s_mov_b32 s{88+i}, s98")
def stamp_flush():
    if STAMP:
        stamp(7)
        E("  s_load_dwordx2 s[100:101], s[0:1], 104")
        E("  s_waitcnt lgkmcnt(0)")
        E(f"  s_add_u32 s84, s100, {hex(0xD00000+KID[cur[0]]*0x10000)}")
        E("  s_addc_u32 s85, s101, 0")
        E("  s_mov_b32 s86, 0x10000"); E("  s_mov_b32 s87, 0x20000")
        E("  s_mov_b64 exec, 1")
        E("  s_lshl_b32 s83, s2, 5")
        E("  v_mov_b32 v0, 0")
        for i in range(8):
            E(f"  v_mov_b32 v{2+i}, s{88+i}")
        E("  buffer_store_dwordx4 v[2:5], v0, s[84:87], s83 offen")
        E("  buffer_store_dwordx4 v[6:9], v0, s[84:87], s83 offen offset:16")
def kstart(name):
    cur[0]=name
    E(f".globl {name}")
    E(".p2align 8")
    E(f".type {name},@function")
    E(f"{name}:")
    if STAMP:
        for i in range(8): E(f"  s_mov_b32 s{88+i}, 0")
        stamp(0)

def unpack(lo, hi, src):
    E(f"  v_lshlrev_b32 v{lo}, 16, v{src}")
    E(f"  v_and_b32 v{hi}, 0xffff0000, v{src}")

WS_RPG=0x1000000; WS_RPU=0x1300000; WS_RPD=0x1600000
def repack_issue():
    E("  v_and_b32 v26, 63, v0")
    E("  v_lshrrev_b32 v27, 6, v0")
    E("  v_and_b32 v28, 15, v26")
    E("  v_lshrrev_b32 v29, 4, v26")
    E("  v_readfirstlane_b32 s54, v27")
    E("  v_lshlrev_b32 v30, 4, v26")
    E("  s_lshl_b32 s55, s2, 2")
    E("  s_add_u32 s55, s55, s54")
    E("  s_cmp_ge_u32 s55, 1080")
    E("  s_cbranch_scc1 k1_rpd")
    E("  s_mov_b32 s56, 0x97B425F")
    E("  s_mul_hi_u32 s57, s55, s56")
    E("  s_mul_i32 s58, s57, 27")
    E("  s_sub_u32 s59, s55, s58")
    E("  s_cmp_ge_u32 s57, 20")
    E("  s_cselect_b32 s68, s50, s48")
    E("  s_cselect_b32 s69, s51, s49")
    E(f"  s_mov_b32 s56, {hex(WS_RPG)}")
    E(f"  s_cselect_b32 s56, {hex(WS_RPU)}, s56")
    E("  s_cselect_b32 s58, 20, 0")
    E("  s_sub_u32 s57, s57, s58")
    E(f"  s_mov_b32 s70, {hex(640*1728*2)}"); E("  s_mov_b32 s71, 0x00020000")
    E("  s_add_u32 s76, s26, s56"); E("  s_addc_u32 s77, s27, 0"); E(f"  s_mov_b32 s78, {hex(54*20*2048)}"); E("  s_mov_b32 s79, 0x00020000")
    E("  s_lshl_b32 s58, s57, 5")
    E("  v_lshlrev_b32 v31, 3, v29")
    E("  v_add_u32 v31, s58, v31")
    E("  s_movk_i32 s58, 3456")
    E("  v_mul_lo_u32 v31, v31, s58")
    E("  v_lshl_add_u32 v31, v28, 3, v31")
    E("  s_lshl_b32 s60, s59, 7")
    for i in range(8):
        E(f"  s_add_u32 s61, s60, {3456*i}")
        E(f"  buffer_load_dwordx2 v[{10+2*i}:{11+2*i}], v31, s[68:71], s61 offen")
    E("  s_mul_i32 s72, s59, 81920")
    E("  s_lshl_b32 s58, s57, 11")
    E("  s_add_u32 s72, s72, s58")
    for j in range(1,4):
        E(f"  s_add_u32 s{72+j}, s72, {(j>>1)*40960+(j&1)*1024}")
    E("  s_branch k1_rpfin")
    E("k1_rpd:")
    E("  s_sub_u32 s55, s55, 1080")
    E("  s_mov_b32 s56, 0x1999999A")
    E("  s_mul_hi_u32 s57, s55, s56")
    E("  s_mul_i32 s58, s57, 10")
    E("  s_sub_u32 s59, s55, s58")
    E("  s_mov_b32 s68, s52"); E("  s_mov_b32 s69, s53")
    E("  s_cmp_lt_u32 s55, 540")
    E(f"  s_cselect_b32 s70, {hex(640*1728*2)}, 0"); E("  s_mov_b32 s71, 0x00020000")
    E(f"  s_add_u32 s76, s26, {hex(WS_RPD)}"); E("  s_addc_u32 s77, s27, 0")
    E("  s_cmp_lt_u32 s55, 540")
    E(f"  s_cselect_b32 s78, {hex(54*40*1024)}, 0"); E("  s_mov_b32 s79, 0x00020000")
    E("  s_lshr_b32 s58, s57, 1")
    E("  s_lshl_b32 s58, s58, 6")
    E("  s_and_b32 s60, s57, 1")
    E("  s_lshl_b32 s60, s60, 1")
    E("  s_add_u32 s58, s58, s60")
    E("  v_lshlrev_b32 v31, 4, v29")
    E("  v_add_u32 v31, s58, v31")
    E("  s_movk_i32 s58, 1280")
    E("  v_mul_lo_u32 v31, v31, s58")
    E("  v_lshl_add_u32 v31, v28, 3, v31")
    E("  s_lshl_b32 s60, s59, 7")
    for i in range(8):
        E(f"  s_add_u32 s61, s60, {(4*(i>>1)+(i&1))*1280}")
        E(f"  buffer_load_dwordx2 v[{10+2*i}:{11+2*i}], v31, s[68:71], s61 offen")
    E(f"  s_mul_i32 s72, s59, {4*54*1024}")
    E("  s_lshl_b32 s58, s57, 10")
    E("  s_add_u32 s72, s72, s58")
    for j in range(1,4):
        E(f"  s_add_u32 s{72+j}, s72, {j*54*1024}")
    E("k1_rpfin:")
def repack_finish():
    E("  s_mov_b32 s62, 0x05040100")
    E("  s_mov_b32 s63, 0x07060302")
    for j in range(4):
        sel="s62" if j%2==0 else "s63"
        for q in range(4):
            E(f"  v_perm_b32 v{32+4*j+q}, v{10+2*(2*q+1)+(j>>1)}, v{10+2*(2*q)+(j>>1)}, {sel}")
        E(f"  buffer_store_dwordx4 v[{32+4*j}:{35+4*j}], v30, s[76:79], s{72+j} offen sc1")

def k0():
    kstart("k0_kernel")
    E("  s_cmp_ge_u32 s2, 320")
    E("  s_cbranch_scc1 k0_done")
    E("  s_load_dwordx4 s[4:7], s[0:1], 8")
    E("  s_load_dwordx2 s[24:25], s[0:1], 24")
    E("  s_load_dwordx2 s[26:27], s[0:1], 104")
    E("  s_mov_b32 s28, 0x1999999A")
    E("  s_mul_hi_u32 s29, s2, s28")
    E("  s_mul_i32 s30, s29, 10")
    E("  s_sub_u32 s30, s2, s30")
    E("  v_and_b32 v1, 7, v0")
    E("  v_lshrrev_b32 v2, 3, v0")
    E("  s_lshl_b32 s31, s29, 6")
    E("  v_lshlrev_b32 v3, 1, v2")
    E("  v_add_u32 v3, s31, v3")
    E("  s_movk_i32 s33, 1280")
    E("  v_mul_lo_u32 v3, v3, s33")
    E("  s_lshl_b32 s32, s30, 7")
    E("  v_lshlrev_b32 v4, 4, v1")
    E("  v_add3_u32 v3, v3, s32, v4")
    for j in range(5):
        E(f"  v_add_u32 v{10+j}, {(j-3)*1280}, v3")
    E("  s_lshl_b32 s34, s30, 9")
    E("  v_lshlrev_b32 v5, 6, v1")
    E("  v_add_u32 v5, s34, v5")
    E("  s_waitcnt lgkmcnt(0)")
    srd(8,4,SZ); srd(12,6,SZ); srd(16,24,640*8); srd(20,26,640*UTS,WS_UT)
    for j in range(5):
        E(f"  buffer_load_dwordx4 v[{20+4*j}:{23+4*j}], v{10+j}, s[8:11], 0 offen")
    E("  buffer_load_dwordx4 v[40:43], v3, s[12:15], 0 offen")
    E("  buffer_load_dwordx4 v[44:47], v3, s[12:15], 0 offen offset:1280")
    for j in range(4):
        E(f"  buffer_load_dwordx4 v[{48+4*j}:{51+4*j}], v5, s[16:19], 0 offen offset:{16*j}")
    E("  v_lshrrev_b32 v6, 2, v2")
    E("  v_lshlrev_b32 v6, 2, v6")
    E("  v_and_b32 v7, 3, v2")
    E("  v_sub_u32 v7, 3, v7")
    E("  v_add_u32 v6, v6, v7")
    E("  v_lshlrev_b32 v6, 2, v6")
    E("  s_movk_i32 s35, 1152")
    E("  v_mul_lo_u32 v7, v1, s35")
    E("  v_add_u32 v6, v6, v7")
    E("  s_waitcnt vmcnt(0)")
    stamp(1)
    for c in range(8):
        unpack(64+4*c+0, 64+4*c+1, 48+2*c)
        unpack(64+4*c+2, 64+4*c+3, 49+2*c)
    for j in range(5):
        for d in range(4):
            unpack(96+8*j+2*d, 96+8*j+2*d+1, 20+4*j+d)
    for i in range(2):
        for d in range(4):
            unpack(136+8*i+2*d, 136+8*i+2*d+1, 40+4*i+d)
    for i in range(2):
        for d in range(4):
            c0=2*d; c1=2*d+1
            t=20
            for j in range(4):
                E(f"  v_mul_f32 v{t+2*j}, v{96+8*(i+j)+c0}, v{64+4*c0+3-j}")
                E(f"  v_mul_f32 v{t+2*j+1}, v{96+8*(i+j)+c1}, v{64+4*c1+3-j}")
            for j in range(4):
                E(f"  v_cvt_pk_bf16_f32 v{t+8+j}, v{t+2*j}, v{t+2*j+1}")
            for j in range(4):
                unpack(t+2*j, t+2*j+1, t+8+j)
            for j in range(1,4):
                E(f"  v_add_f32 v{t}, v{t}, v{t+2*j}")
                E(f"  v_add_f32 v{t+1}, v{t+1}, v{t+2*j+1}")
                E(f"  v_cvt_pk_bf16_f32 v{t+12}, v{t}, v{t+1}")
                unpack(t, t+1, t+12)
            E(f"  v_mul_f32 v{136+8*i+c0}, v{t}, v{136+8*i+c0}")
            E(f"  v_mul_f32 v{136+8*i+c1}, v{t+1}, v{136+8*i+c1}")
    for c in range(8):
        E(f"  v_cvt_pk_bf16_f32 v{40+c}, v{144+c}, v{136+c}")
    for c in range(8):
        E(f"  ds_write_b32 v6, v{40+c} offset:{144*c}")
    E("  s_waitcnt lgkmcnt(0)")
    E("  s_barrier")
    stamp(2)
    E("  v_lshrrev_b32 v8, 2, v0")
    E("  v_and_b32 v9, 3, v0")
    E("  s_movk_i32 s35, 144")
    E("  v_mul_lo_u32 v16, v8, s35")
    E("  v_lshl_add_u32 v16, v9, 4, v16")
    E("  ds_read_b128 v[48:51], v16")
    E("  ds_read_b128 v[52:55], v16 offset:64")
    E(f"  s_mul_i32 s36, s30, {64*UTS}")
    E("  s_lshl_b32 s37, s29, 7")
    E("  s_add_u32 s36, s36, s37")
    E(f"  s_movk_i32 s38, {UTS}")
    E("  v_mul_lo_u32 v17, v8, s38")
    E("  v_lshl_add_u32 v17, v9, 4, v17")
    E("  v_add_u32 v17, s36, v17")
    E("  s_waitcnt lgkmcnt(0)")
    E("  buffer_store_dwordx4 v[48:51], v17, s[20:23], 0 offen sc1")
    E("  buffer_store_dwordx4 v[52:55], v17, s[20:23], 0 offen offset:64 sc1")
    stamp_flush()
    E("k0_done:")
    E("  s_endpgm")

HSTR=266*16
UB=8*HSTR
K1_LDS=UB+512+4096
def k1():
    kstart("k1_kernel")
    E("  s_cmp_ge_u32 s2, 640")
    E("  s_cbranch_scc1 k1_done")
    E("  s_load_dwordx4 s[4:7], s[0:1], 32")
    E("  s_load_dwordx2 s[26:27], s[0:1], 104")
    E("  s_load_dwordx4 s[48:51], s[0:1], 64")
    E("  s_load_dwordx2 s[52:53], s[0:1], 80")
    E("  s_and_b32 s3, s2, 7")
    E("  s_mul_i32 s3, s3, 80")
    E("  s_lshr_b32 s28, s2, 3")
    E("  s_add_u32 s3, s3, s28")
    E("  s_lshl_b32 s28, s3, 12")
    E("  v_lshlrev_b32 v1, 4, v0")
    E("  v_add_u32 v2, -32, v1")
    E("  v_add_u32 v3, -16, v1")
    E("  s_lshl_b32 s30, s3, 1")
    E("  v_mov_b32 v6, s30")
    E("  s_waitcnt lgkmcnt(0)")
    E("  s_add_u32 s8, s4, s28"); E("  s_addc_u32 s9, s5, 0"); E("  s_movk_i32 s10, 4096"); E("  s_mov_b32 s11, 0x00020000")
    E(f"  s_mul_i32 s29, s3, {UTS}")
    E(f"  s_add_u32 s29, s29, {hex(WS_UT)}")
    E("  s_add_u32 s12, s26, s29"); E("  s_addc_u32 s13, s27, 0"); E("  s_movk_i32 s14, 4096"); E("  s_mov_b32 s15, 0x00020000")
    srd(16,26,SZ,WS_ZT)
    srd(20,6,1280)
    E("  buffer_load_dwordx4 v[10:13], v2, s[8:11], 0 offen")
    E("  buffer_load_dwordx4 v[14:17], v3, s[8:11], 0 offen")
    E("  buffer_load_dwordx4 v[40:43], v1, s[12:15], 0 offen")
    E("  buffer_load_dwordx4 v[44:47], v1, s[8:11], 0 offen offset:4064")
    E("  buffer_load_dwordx4 v[48:51], v1, s[8:11], 0 offen offset:4080")
    E("  buffer_load_ushort v7, v6, s[20:23], 0 offen")
    def fill(wbase, addr, off):
        w=wbase
        for k in range(7):
            E(f"  v_alignbit_b32 v{20+k}, v{w+k+1}, v{w+k}, 16")
        for c in range(8):
            if c%2==0: src=w+c//2
            else: src=20+(c-1)//2
            if src%2==1:
                t=28+4*((c//2)%2)
                for q in range(4):
                    E(f"  v_mov_b32 v{t+q}, v{src+q}")
                src=t
            E(f"  ds_write_b128 v{addr}, v[{src}:{src+3}] offset:{c*HSTR+off}")
    E("  v_mov_b32 v36, 0"); E("  v_mov_b32 v37, 0"); E("  v_mov_b32 v38, 0"); E("  v_mov_b32 v39, 0")
    E("  v_cmp_gt_u32 vcc, 32, v0")
    E("  s_and_saveexec_b64 s[32:33], vcc")
    E(f"  ds_write_b128 v1, v[36:39] offset:{UB}")
    E("  s_mov_b64 exec, s[32:33]")
    E("  s_waitcnt vmcnt(4)")
    fill(10,1,0)
    E("  s_waitcnt vmcnt(3)")
    E(f"  ds_write_b128 v1, v[40:43] offset:{UB+512}")
    E("  s_waitcnt vmcnt(1)")
    E("  v_cmp_gt_u32 vcc, 2, v0")
    E("  s_and_saveexec_b64 s[32:33], vcc")
    fill(44,1,4096)
    E("  s_mov_b64 exec, s[32:33]")
    E("  v_and_b32 v50, 63, v0")
    E("  v_lshrrev_b32 v51, 6, v0")
    E("  v_and_b32 v52, 15, v50")
    E("  v_lshrrev_b32 v53, 4, v50")
    E("  v_add_u32 v54, 1, v52")
    E("  v_and_b32 v55, 7, v54")
    E(f"  s_movk_i32 s34, {HSTR}")
    E("  v_mul_lo_u32 v55, v55, s34")
    E("  v_lshrrev_b32 v54, 3, v54")
    E("  v_sub_u32 v54, v54, v53")
    E("  v_add_u32 v54, 3, v54")
    E("  v_lshl_add_u32 v55, v54, 4, v55")
    E("  v_lshl_add_u32 v55, v51, 7, v55")
    E("  v_lshlrev_b32 v56, 5, v52")
    E("  v_lshl_add_u32 v56, v53, 4, v56")
    E(f"  v_add_u32 v56, {UB+512-32}, v56")
    E("  v_lshlrev_b32 v57, 7, v51")
    E("  v_sub_u32 v56, v56, v57")
    E("  s_waitcnt vmcnt(0) lgkmcnt(0)")
    repack_issue()
    for i in range(32):
        E(f"  v_mov_b32 v{64+i}, 0")
    E("  s_mov_b32 s44, 2")
    E("  s_barrier")
    stamp(1)
    E("k1_loop:")
    for k in range(8):
        E(f"  ds_read_b128 v[{100+4*k}:{103+4*k}], v56 offset:{512*k}")
    for pp in range(8):
        E(f"  ds_read_b128 v[{132+4*pp}:{135+4*pp}], v55 offset:{8*pp*64}")
    E("  v_add_u32 v55, 64, v55")
    E("  v_add_u32 v56, -64, v56")
    for pp in range(8):
        E(f"  s_waitcnt lgkmcnt({7-pp})")
        for i in range(pp,8):
            E(f"  v_mfma_f32_16x16x32_bf16 v[{64+4*i}:{67+4*i}], v[{132+4*pp}:{135+4*pp}], v[{100+4*(i-pp)}:{103+4*(i-pp)}], v[{64+4*i}:{67+4*i}]")
    E("  s_sub_u32 s44, s44, 1")
    E("  s_cmp_lg_u32 s44, 0")
    E("  s_cbranch_scc1 k1_loop")
    E("  s_nop 7")
    E("  s_barrier")
    stamp(2)
    E("  v_lshlrev_b32 v58, 4, v50")
    E("  v_lshl_add_u32 v58, v51, 13, v58")
    for i in range(8):
        E(f"  ds_write_b128 v58, v[{64+4*i}:{67+4*i}] offset:{1024*i}")
    E("  v_lshlrev_b32 v58, 4, v50")
    E("  v_lshl_add_u32 v58, v51, 11, v58")
    E("  v_lshlrev_b32 v59, 1, v52")
    E("  v_lshrrev_b32 v60, 1, v53")
    E("  v_add_u32 v59, v59, v60")
    E("  v_lshl_add_u32 v62, v51, 6, v59")
    E("  v_lshlrev_b32 v59, 4, v62")
    E("  v_and_b32 v63, 1, v53")
    E("  v_sub_u32 v60, 1, v63")
    E("  v_lshl_add_u32 v59, v60, 3, v59")
    E(f"  ds_read_b64 v[140:141], v59 offset:{UB+512}")
    E(f"  ds_read_b64 v[142:143], v59 offset:{UB+512+512}")
    E("  v_lshlrev_b32 v61, 16, v7")
    E("  s_movk_i32 s34, 10240")
    E("  v_mul_lo_u32 v62, v62, s34")
    E("  v_lshl_add_u32 v62, v63, 3, v62")
    E("  s_lshl_b32 s35, s3, 4")
    E("  v_add_u32 v62, s35, v62")
    E(f"  s_mov_b32 s36, {32*10240}")
    E("  s_waitcnt lgkmcnt(0)")
    E("  s_barrier")
    for tt in range(2):
        for ww in range(4):
            E(f"  ds_read_b128 v[{100+16*tt+4*ww}:{103+16*tt+4*ww}], v58 offset:{ww*8192+tt*1024}")
    for tt in range(2):
        b=100+16*tt
        E(f"  s_waitcnt lgkmcnt({4-4*tt})")
        for q in range(4):
            E(f"  v_add_f32 v{b+q}, v{b+q}, v{b+4+q}")
            E(f"  v_add_f32 v{b+8+q}, v{b+8+q}, v{b+12+q}")
        for q in range(4):
            E(f"  v_add_f32 v{b+q}, v{b+q}, v{b+8+q}")
        E(f"  v_cvt_pk_bf16_f32 v150, v{b}, v{b+1}")
        E(f"  v_cvt_pk_bf16_f32 v151, v{b+2}, v{b+3}")
        unpack(b, b+1, 150); unpack(b+2, b+3, 151)
        uA=140+2*tt; uB=141+2*tt
        unpack(155,154,uA)
        unpack(153,152,uB)
        for q in range(4):
            E(f"  v_mul_f32 v{152+q}, v{152+q}, v61")
        E("  v_cvt_pk_bf16_f32 v150, v152, v153")
        E("  v_cvt_pk_bf16_f32 v151, v154, v155")
        unpack(152,153,150); unpack(154,155,151)
        for q in range(4):
            E(f"  v_add_f32 v{b+q}, v{b+q}, v{152+q}")
        E(f"  v_cvt_pk_bf16_f32 v{156+2*tt}, v{b}, v{b+1}")
        E(f"  v_cvt_pk_bf16_f32 v{157+2*tt}, v{b+2}, v{b+3}")
        E(f"  buffer_store_dwordx2 v[{156+2*tt}:{157+2*tt}], v62, s[16:19], {'s36' if tt else '0'} offen")
    E("  s_waitcnt vmcnt(2)")
    repack_finish()
    stamp_flush()
    E("k1_done:")
    E("  s_endpgm")

def round_pair(a,b,tmp):
    E(f"  v_cvt_pk_bf16_f32 v{tmp}, v{a}, v{b}")
    unpack(a,b,tmp)

def wave_sum(r, sdst):
    for ctl in ["row_shr:1","row_shr:2","row_shr:4","row_shr:8"]:
        E("  s_nop 1")
        E(f"  v_add_f32_dpp v{r}, v{r}, v{r} {ctl} row_mask:0xf bank_mask:0xf bound_ctrl:0")
    E("  s_nop 1")
    E(f"  v_add_f32_dpp v{r}, v{r}, v{r} row_bcast:15 row_mask:0xa bank_mask:0xf")
    E("  s_nop 1")
    E(f"  v_add_f32_dpp v{r}, v{r}, v{r} row_bcast:31 row_mask:0xc bank_mask:0xf")
    E("  s_nop 0")
    E(f"  v_readlane_b32 s{sdst}, v{r}, 63")
    E("  s_nop 1")

def layernorm(X, O):
    E(f"  v_add_f32 v60, v{X}, v{X+1}")
    E(f"  v_add_f32 v61, v{X+2}, v{X+3}")
    E(f"  v_add_f32 v62, v{X+4}, v{X+5}")
    E(f"  v_add_f32 v63, v{X+6}, v{X+7}")
    E(f"  v_add_f32 v64, v{X+8}, v{X+9}")
    E("  v_add_f32 v60, v60, v61"); E("  v_add_f32 v62, v62, v63")
    E("  v_add_f32 v60, v60, v64"); E("  v_add_f32 v60, v60, v62")
    wave_sum(60,50)
    E("  v_mov_b32 v61, s44")
    E("  v_mul_f32 v61, s50, v61")
    for i in range(10):
        E(f"  v_sub_f32 v{64+i}, v{X+i}, v61")
    E("  v_mul_f32 v60, v64, v64"); E("  v_mul_f32 v62, v65, v65")
    for i in range(2,10,2):
        E(f"  v_fmac_f32 v60, v{64+i}, v{64+i}")
        E(f"  v_fmac_f32 v62, v{65+i}, v{65+i}")
    E("  v_add_f32 v60, v60, v62")
    wave_sum(60,51)
    E("  v_mov_b32 v62, s44")
    E("  v_mul_f32 v62, s51, v62")
    E("  v_cvt_pk_bf16_f32 v63, v61, v62")
    unpack(61,62,63)
    E("  v_add_f32 v62, s45, v62")
    E("  v_cvt_pk_bf16_f32 v63, v62, v62")
    E("  v_lshlrev_b32 v62, 16, v63")
    E("  v_sqrt_f32 v62, v62")
    E("  s_nop 0")
    E("  v_cvt_pk_bf16_f32 v63, v62, v62")
    E("  v_lshlrev_b32 v62, 16, v63")
    E("  v_rcp_f32 v62, v62")
    for i in range(10):
        E(f"  v_sub_f32 v{64+i}, v{X+i}, v61")
    for i in range(0,10,2):
        round_pair(64+i,65+i,63)
    for i in range(10):
        E(f"  v_mul_f32 v{O+i}, v{64+i}, v62")
    for i in range(0,10,2):
        round_pair(O+i,O+i+1,63)

def k2():
    kstart("k2_kernel")
    E("  s_cmp_ge_u32 s2, 512")
    E("  s_cbranch_scc1 k2_done")
    E("  s_load_dwordx2 s[4:5], s[0:1], 0")
    E("  s_load_dwordx2 s[6:7], s[0:1], 56")
    E("  s_load_dwordx2 s[24:25], s[0:1], 88")
    E("  s_load_dwordx2 s[26:27], s[0:1], 104")
    E("  v_lshrrev_b32 v2, 6, v0")
    E("  v_and_b32 v3, 63, v0")
    E("  s_nop 0")
    E("  v_readfirstlane_b32 s46, v2")
    E("  s_lshl_b32 s47, s2, 2")
    E("  s_add_u32 s46, s46, s47")
    E("  s_mul_i32 s47, s46, 1280")
    E("  s_lshr_b32 s48, s46, 3")
    E("  s_mul_i32 s48, s48, 10240")
    E("  s_and_b32 s49, s46, 7")
    E("  s_lshl_b32 s49, s49, 1")
    E("  s_add_u32 s48, s48, s49")
    E("  s_mov_b32 s44, 0x3acccccd")
    E("  s_mov_b32 s45, 0x3727c5ac")
    E("  v_lshlrev_b32 v1, 2, v3")
    E("  v_lshlrev_b32 v4, 5, v3")
    E("  s_waitcnt lgkmcnt(0)")
    srd(8,4,SZ); srd(12,6,1280); srd(16,24,SZ); srd(20,26,SZ,WS_ZT)
    srd(28,26,SZ,WS_H); srd(32,26,SZ,WS_LNH); srd(36,26,8192,WS_R)
    for j in range(5):
        E(f"  buffer_load_dword v{10+j}, v1, s[8:11], s47 offen offset:{256*j}")
    for j in range(5):
        E(f"  buffer_load_ushort v{40+2*j}, v4, s[20:23], s48 offen offset:{2048*j if j<2 else 0}" if j<2 else
          f"  buffer_load_ushort v{40+2*j}, v5, s[20:23], s48 offen offset:{2048*(j-2)}" if j<4 else
          f"  buffer_load_ushort v{40+2*j}, v6, s[20:23], s48 offen")
        E(f"  buffer_load_ushort v{41+2*j}, v4, s[20:23], s48 offen offset:{2048*j+16}" if j<2 else
          f"  buffer_load_ushort v{41+2*j}, v5, s[20:23], s48 offen offset:{2048*(j-2)+16}" if j<4 else
          f"  buffer_load_ushort v{41+2*j}, v6, s[20:23], s48 offen offset:16")
        if j==1:
            E("  v_add_u32 v5, 4096, v4")
            E("  v_add_u32 v6, 8192, v4")
    for j in range(5):
        E(f"  buffer_load_dword v{15+j}, v1, s[12:15], 0 offen offset:{256*j}")
    E("  s_waitcnt vmcnt(15)")
    stamp(1)
    for j in range(5):
        unpack(20+2*j,21+2*j,10+j)
    layernorm(20,30)
    E("  s_waitcnt vmcnt(5)")
    stamp(2)
    for i in range(10):
        E(f"  v_lshlrev_b32 v{40+i}, 16, v{40+i}")
    for i in range(10):
        E(f"  v_mul_f32 v{40+i}, v{30+i}, v{40+i}")
    for i in range(0,10,2):
        round_pair(40+i,41+i,63)
    for i in range(10):
        E(f"  v_add_f32 v{40+i}, v{20+i}, v{40+i}")
    for j in range(5):
        E(f"  v_cvt_pk_bf16_f32 v{10+j}, v{40+2*j}, v{41+2*j}")
        unpack(40+2*j,41+2*j,10+j)
    for j in range(5):
        E(f"  buffer_store_dword v{10+j}, v1, s[28:31], s47 offen offset:{256*j} sc1")
    layernorm(40,30)
    for j in range(5):
        E(f"  v_cvt_pk_bf16_f32 v{80+j}, v{30+2*j}, v{31+2*j}")
    for j in range(5):
        E(f"  buffer_store_dword v{80+j}, v1, s[32:35], s47 offen offset:{256*j} sc1")
    for i in range(10):
        E(f"  v_add_f32 v{20+i}, v{40+i}, v{30+i}")
    for j in range(5):
        E(f"  v_cvt_pk_bf16_f32 v{85+j}, v{20+2*j}, v{21+2*j}")
    for j in range(5):
        E(f"  buffer_store_dword v{85+j}, v1, s[16:19], s47 offen offset:{256*j} sc1")
    E("  s_waitcnt vmcnt(15)")
    for j in range(5):
        unpack(64+2*j,65+2*j,15+j)
    E("  v_mul_f32 v60, v30, v64"); E("  v_mul_f32 v61, v31, v65")
    for i in range(2,10,2):
        E(f"  v_fmac_f32 v60, v{30+i}, v{64+i}")
        E(f"  v_fmac_f32 v61, v{31+i}, v{65+i}")
    E("  v_add_f32 v60, v60, v61")
    wave_sum(60,57)
    E("  v_mov_b32 v60, s57")
    E("  v_cvt_pk_bf16_f32 v60, v60, v60")
    E("  v_lshlrev_b32 v60, 16, v60")
    E("  s_lshl_b32 s49, s46, 2")
    E("  v_mov_b32 v7, 0")
    E("  v_cmp_eq_u32 vcc, 0, v3")
    E("  s_and_saveexec_b64 s[40:41], vcc")
    E("  buffer_store_dword v60, v7, s[36:39], s49 offen")
    stamp_flush()
    E("k2_done:")
    E("  s_endpgm")

def topk():
    E("  v_mov_b32 v30, 0")
    E("  s_cmp_ge_u32 s68, 4")
    E("  s_cbranch_scc1 k3_tk_skip")
    net=[(0,1),(2,3),(4,5),(6,7),(0,2),(1,3),(4,6),(5,7),(1,2),(5,6),(0,4),(3,7),(1,5),(2,6),(1,4),(3,6),(2,4),(3,5),(3,4)]
    for (x,y) in net:
        E(f"  v_max_u32 v20, v{10+x}, v{10+y}")
        E(f"  v_min_u32 v{10+y}, v{10+x}, v{10+y}")
        E(f"  v_mov_b32 v{10+x}, v20")
    for rnd in range(8):
        E("  v_mov_b32 v20, v10")
        E("  s_nop 1")
        for ctl in ["row_shr:1","row_shr:2","row_shr:4","row_shr:8"]:
            E(f"  v_max_u32_dpp v20, v20, v20 {ctl} row_mask:0xf bank_mask:0xf bound_ctrl:0")
            E("  s_nop 1")
        E("  v_max_u32_dpp v20, v20, v20 row_bcast:15 row_mask:0xa bank_mask:0xf")
        E("  s_nop 1")
        E("  v_max_u32_dpp v20, v20, v20 row_bcast:31 row_mask:0xc bank_mask:0xf")
        E("  s_nop 0")
        E("  v_readlane_b32 s50, v20, 63")
        E("  s_nop 1")
        E("  v_cmp_eq_u32 vcc, s50, v10")
        E(f"  v_writelane_b32 v30, s50, {rnd}")
        E("  s_nop 0")
        for i in range(7-rnd):
            E(f"  v_cndmask_b32 v{10+i}, v{10+i}, v{11+i}, vcc")
        E(f"  v_cndmask_b32 v{10+7-rnd}, v{10+7-rnd}, 0, vcc")
    E("k3_tk_skip:")
    E("  v_and_b32 v31, 63, v0")
    E("  v_lshrrev_b32 v32, 6, v0")
    E("  v_lshlrev_b32 v33, 3, v32")
    E("  v_add_u32 v33, v33, v31")
    E("  v_lshlrev_b32 v33, 2, v33")
    E("  v_cmp_gt_u32 s[42:43], 8, v31")
    E("  v_cmp_gt_u32 vcc, 256, v0")
    E("  s_nop 1")
    E("  s_and_b64 vcc, vcc, s[42:43]")
    E("  s_and_saveexec_b64 s[40:41], vcc")
    E(f"  ds_write_b32 v33, v30 offset:{TK_OFF}")
    E("  s_mov_b64 exec, s[40:41]")
    E("  s_waitcnt lgkmcnt(0)")
    E("  s_barrier")
    E("  v_and_b32 v34, 31, v0")
    E("  v_lshlrev_b32 v34, 2, v34")
    E(f"  ds_read_b32 v35, v34 offset:{TK_OFF}")
    E("  v_mov_b32 v36, 0")
    for q in range(8):
        E(f"  ds_read_b128 v[{40+4*q}:{43+4*q}], v36 offset:{TK_OFF+16*q}")
    E("  s_waitcnt lgkmcnt(0)")
    E("  v_mov_b32 v37, 0")
    for q in range(32):
        E(f"  v_cmp_gt_u32 vcc, v{40+q}, v35")
        E(f"  v_addc_co_u32 v37, vcc, 0, v37, vcc")
    E("  v_cmp_gt_u32 s[42:43], 8, v37")
    E("  v_cmp_gt_u32 vcc, 32, v0")
    E("  s_nop 1")
    E("  s_and_b64 vcc, vcc, s[42:43]")
    E("  s_and_saveexec_b64 s[40:41], vcc")
    E("  v_lshlrev_b32 v38, 2, v37")
    E(f"  ds_write_b32 v38, v35 offset:{TK_OFF+128}")
    E("  s_mov_b64 exec, s[40:41]")
    E("  s_waitcnt lgkmcnt(0)")
    E("  s_barrier")

TK_OFF=16384
GU_OFF=16384+512
FL_OFF=16384+1024
WS_ACC=0xC30000
NREP=4
def k3():
    kstart("k3_kernel")
    E("  s_cmp_ge_u32 s2, 54")
    E("  s_cbranch_scc1 k3_done")
    E("  s_load_dwordx4 s[4:7], s[0:1], 64")
    E("  s_load_dwordx4 s[24:27], s[0:1], 80")
    E("  s_load_dwordx4 s[52:55], s[0:1], 96")
    E("  v_and_b32 v1, 255, v0")
    E("  v_lshlrev_b32 v1, 5, v1")
    E("  v_and_b32 v2, 63, v0")
    E("  v_lshrrev_b32 v3, 6, v0")
    E("  v_and_b32 v4, 15, v2")
    E("  v_lshrrev_b32 v5, 4, v2")
    E("  v_readfirstlane_b32 s68, v3")
    E("  v_and_b32 v6, 3, v3")
    E("  s_movk_i32 s44, 160")
    E("  v_mul_lo_u32 v6, v6, s44")
    E("  v_lshl_add_u32 v6, v5, 3, v6")
    E("  v_lshlrev_b32 v7, 4, v2")
    E("  s_and_b32 s45, s68, 3")
    E("  s_mul_i32 s45, s45, 10240")
    E("  s_mul_i32 s46, s2, 40960")
    E("  s_add_u32 s45, s45, s46")
    E(f"  s_mul_i32 s48, s2, {54*1024}")
    E("  s_lshl_b32 s49, s68, 10")
    E("  s_add_u32 s48, s48, s49")
    E("  s_waitcnt lgkmcnt(0)")
    E("  s_cmp_ge_u32 s68, 4")
    E(f"  s_mov_b32 s49, {hex(WS_RPG)}")
    E(f"  s_cselect_b32 s49, {hex(WS_RPU)}, s49")
    E("  s_add_u32 s8, s54, s49"); E("  s_addc_u32 s9, s55, 0"); E(f"  s_mov_b32 s10, {hex(54*20*2048)}"); E("  s_mov_b32 s11, 0x00020000")
    srd(16,54,8192,WS_R); srd(20,54,SZ,WS_LNH)
    srd(28,54,54*40*1024,WS_RPD); srd(32,54,54*512,WS_GU); srd(56,54,SZ,WS_H); srd(60,26,SZ); srd(64,52,256)
    E("  buffer_load_dwordx4 v[10:13], v1, s[16:19], 0 offen")
    E("  buffer_load_dwordx4 v[14:17], v1, s[16:19], 0 offen offset:16")
    for f in range(10):
        E(f"  s_add_u32 s47, s45, {1024*f}")
        E(f"  buffer_load_dwordx4 v[{96+4*f}:{99+4*f}], v7, s[8:11], s47 offen")
    for q in range(7):
        E(f"  s_add_u32 s47, s48, {8192*q}")
        E(f"  buffer_load_dwordx4 v[{136+4*q}:{139+4*q}], v7, s[28:31], s47 offen")
    E("  s_waitcnt vmcnt(17)")
    stamp(1)
    for i in range(8):
        E(f"  v_ashrrev_i32 v20, 31, v{10+i}")
        E(f"  v_or_b32 v20, 0x80000000, v20")
        E(f"  v_xor_b32 v{10+i}, v{10+i}, v20")
        E(f"  v_and_b32 v{10+i}, 0xffff0000, v{10+i}")
        E(f"  v_lshlrev_b32 v21, 3, v0")
        E(f"  v_sub_u32 v21, {0xFFFF-i}, v21")
        E(f"  v_or_b32 v{10+i}, v{10+i}, v21")
    topk()
    stamp(2)
    E("  v_and_b32 v8, 7, v4")
    E("  v_lshlrev_b32 v8, 2, v8")
    E(f"  ds_read_b32 v9, v8 offset:{TK_OFF+128}")
    E("  s_waitcnt lgkmcnt(0)")
    E("  v_and_b32 v18, 0xffff, v9")
    E("  v_sub_u32 v18, 0xffff, v18")
    E("  s_movk_i32 s44, 1280")
    E("  v_mul_lo_u32 v19, v18, s44")
    E("  v_lshl_add_u32 v19, v6, 1, v19")
    for ks in range(5):
        E(f"  buffer_load_dwordx4 v[{176+4*ks}:{179+4*ks}], v19, s[20:23], 0 offen offset:{64*ks}")
    for i in range(8):
        E(f"  v_mov_b32 v{40+i}, 0")
    E("  s_waitcnt vmcnt(0)")
    stamp(3)
    for ks in range(5):
        for par in range(2):
            E(f"  v_mfma_f32_16x16x32_bf16 v[{40+4*par}:{43+4*par}], v[{176+4*ks}:{179+4*ks}], v[{96+8*ks+4*par}:{99+8*ks+4*par}], v[{40+4*par}:{43+4*par}]")
    E("  s_nop 7")
    E("  v_lshlrev_b32 v24, 4, v2")
    E("  v_lshl_add_u32 v24, v3, 11, v24")
    for q in range(2):
        E(f"  ds_write_b128 v24, v[{40+4*q}:{43+4*q}] offset:{1024*q}")
    E("  s_waitcnt lgkmcnt(0)")
    E("  s_barrier")
    stamp(4)
    E("  v_cmp_gt_u32 vcc, 32, v0")
    E("  s_and_saveexec_b64 s[40:41], vcc")
    E("  s_cbranch_execz k3_skipgu")
    E("  v_lshlrev_b32 v24, 4, v0")
    for w in range(8):
        for q in range(2):
            E(f"  ds_read_b128 v[{64+8*w+4*q}:{67+8*w+4*q}], v24 offset:{2048*w+1024*q}")
    E("  s_waitcnt lgkmcnt(0)")
    for j in range(8):
        E(f"  v_add_f32 v{64+j}, v{64+j}, v{72+j}")
        E(f"  v_add_f32 v{80+j}, v{80+j}, v{88+j}")
        E(f"  v_add_f32 v{96+j}, v{96+j}, v{104+j}")
        E(f"  v_add_f32 v{112+j}, v{112+j}, v{120+j}")
    for j in range(8):
        E(f"  v_add_f32 v{64+j}, v{64+j}, v{80+j}")
        E(f"  v_add_f32 v{72+j}, v{96+j}, v{112+j}")
    for j in range(0,16,2):
        round_pair(64+j,65+j,130)
    for j in range(8):
        E(f"  v_mul_f32 v{80+j}, 0xbfb8aa3b, v{64+j}")
    for j in range(8):
        E(f"  v_exp_f32 v{80+j}, v{80+j}")
    E("  s_nop 0")
    for j in range(8):
        E(f"  v_add_f32 v{80+j}, 1.0, v{80+j}")
    for j in range(8):
        E(f"  v_rcp_f32 v{80+j}, v{80+j}")
    E("  s_nop 0")
    for j in range(8):
        E(f"  v_mul_f32 v{80+j}, v{64+j}, v{80+j}")
    for j in range(0,8,2):
        round_pair(80+j,81+j,130)
    for j in range(8):
        E(f"  v_mul_f32 v{80+j}, v{80+j}, v{72+j}")
    E("  v_lshlrev_b32 v25, 8, v5")
    E("  v_lshl_add_u32 v25, v4, 2, v25")
    E("  s_lshl_b32 s47, s2, 9")
    for i in range(4):
        E(f"  v_cvt_pk_bf16_f32 v{90+i}, v{80+i}, v{84+i}")
        E(f"  buffer_store_dword v{90+i}, v25, s[32:35], s47 offen offset:{64*i} sc1")
    E("  s_waitcnt vmcnt(0)")
    E("  v_cmp_eq_u32 vcc, 0, v0")
    E("  s_and_saveexec_b64 s[42:43], vcc")
    E("  v_mov_b32 v28, 1")
    E("  v_mov_b32 v29, 0")
    E("  buffer_atomic_add v28, v29, s[64:67], 0 offen")
    E("  s_cmp_ge_u32 s2, 40")
    E("  s_cbranch_scc1 k3_skipgu")
    E("k3_poll:")
    E("  buffer_load_dword v28, v29, s[64:67], 0 offen sc1")
    E("  s_waitcnt vmcnt(0)")
    E("  v_readfirstlane_b32 s47, v28")
    E("  s_nop 3")
    E("  s_cmp_ge_u32 s47, 54")
    E("  s_cbranch_scc1 k3_skipgu")
    E("  s_sleep 1")
    E("  s_branch k3_poll")
    E("k3_skipgu:")
    E("  s_mov_b64 exec, s[40:41]")
    E("  s_cmp_ge_u32 s2, 40")
    E("  s_cbranch_scc1 k3_fin")
    E("  s_barrier")
    stamp(5)
    E("  v_and_b32 v8, 7, v4")
    E("  v_lshlrev_b32 v8, 6, v8")
    E("  v_lshl_add_u32 v8, v5, 4, v8")
    E("  s_lshl_b32 s47, s68, 9")
    for q in range(7):
        E(f"  buffer_load_dwordx4 v[{96+4*q}:{99+4*q}], v8, s[32:35], s47 offen offset:0 sc1")
        if q<6: E("  s_add_u32 s47, s47, 4096")
    for i in range(4):
        E(f"  v_mov_b32 v{40+i}, 0")
    for q in range(7):
        E(f"  s_waitcnt vmcnt({6-q})")
        E(f"  v_mfma_f32_16x16x32_bf16 v[40:43], v[{96+4*q}:{99+4*q}], v[{136+4*q}:{139+4*q}], v[40:43]")
    E("  s_nop 7")
    E("  v_lshlrev_b32 v24, 4, v2")
    E("  v_lshl_add_u32 v24, v3, 10, v24")
    E("  ds_write_b128 v24, v[40:43]")
    E("  s_waitcnt lgkmcnt(0)")
    E("  s_barrier")
    stamp(6)
    E("  v_cmp_gt_u32 vcc, 32, v0")
    E("  s_and_saveexec_b64 s[40:41], vcc")
    E("  s_cbranch_execz k3_fin")
    E("  v_lshlrev_b32 v24, 4, v0")
    for w in range(8):
        E(f"  ds_read_b128 v[{96+4*w}:{99+4*w}], v24 offset:{1024*w}")
    E("  v_lshlrev_b32 v31, 4, v5")
    E(f"  ds_read_b128 v[44:47], v31 offset:{TK_OFF+128}")
    E("  s_waitcnt lgkmcnt(0)")
    E("  s_lshr_b32 s47, s2, 2")
    E("  s_lshl_b32 s47, s47, 6")
    E("  s_and_b32 s48, s2, 3")
    E("  s_add_u32 s47, s47, s48")
    E("  s_lshl_b32 s47, s47, 1")
    E("  s_movk_i32 s44, 1280")
    for i in range(4):
        E(f"  v_and_b32 v{48+i}, 0xffff, v{44+i}")
        E(f"  v_sub_u32 v{48+i}, 0xffff, v{48+i}")
        E(f"  v_mul_lo_u32 v{48+i}, v{48+i}, s44")
        E(f"  v_lshl_add_u32 v{48+i}, v4, 3, v{48+i}")
        E(f"  buffer_load_ushort v{52+i}, v{48+i}, s[56:59], s47 offen")
        E(f"  buffer_load_ushort v{56+i}, v{48+i}, s[20:23], s47 offen")
    for i in range(4):
        E(f"  v_and_b32 v20, 0xffff0000, v{44+i}")
        E("  v_ashrrev_i32 v21, 31, v20")
        E("  v_not_b32 v21, v21")
        E("  v_or_b32 v21, 0x80000000, v21")
        E("  v_xor_b32 v20, v20, v21")
        E("  v_and_b32 v20, 0xffff0000, v20")
        E(f"  v_mul_f32 v{60+i}, 0xbfb8aa3b, v20")
    for i in range(4):
        E(f"  v_exp_f32 v{60+i}, v{60+i}")
    E("  s_nop 0")
    for i in range(4):
        E(f"  v_add_f32 v{60+i}, 1.0, v{60+i}")
    for i in range(4):
        E(f"  v_rcp_f32 v{60+i}, v{60+i}")
    E("  s_nop 0")
    round_pair(60,61,64); round_pair(62,63,64)
    for w in range(1,8):
        for i in range(4):
            E(f"  v_add_f32 v{96+i}, v{96+i}, v{96+4*w+i}")
    round_pair(96,97,64); round_pair(98,99,64)
    for i in range(4):
        E(f"  v_mul_f32 v{96+i}, v{96+i}, v{60+i}")
    round_pair(96,97,64); round_pair(98,99,64)
    E("  s_waitcnt vmcnt(0)")
    for i in range(4):
        E(f"  v_lshlrev_b32 v{56+i}, 16, v{56+i}")
        E(f"  v_lshlrev_b32 v{52+i}, 16, v{52+i}")
        E(f"  v_add_f32 v{96+i}, v{96+i}, v{56+i}")
    round_pair(96,97,64); round_pair(98,99,64)
    for i in range(4):
        E(f"  v_add_f32 v{96+i}, v{96+i}, v{52+i}")
        E(f"  v_cvt_pk_bf16_f32 v{96+i}, v{96+i}, v{96+i}")
        E(f"  buffer_store_short v{96+i}, v{48+i}, s[60:63], s47 offen")
    E("k3_fin:")
    stamp_flush()
    E("k3_done:")
    E("  s_endpgm")

VG={"k0_kernel":152,"k4_kernel":168,"k1_kernel":168,"k2_kernel":96}
def desc(name):
    E(f".amdhsa_kernel {name}")
    E(f"  .amdhsa_next_free_vgpr {VG.get(name,256)}")
    E("  .amdhsa_next_free_sgpr 102")
    E(f"  .amdhsa_accum_offset {VG.get(name,256)}")
    E("  .amdhsa_group_segment_fixed_size 0")
    E("  .amdhsa_kernarg_size 112")
    E("  .amdhsa_user_sgpr_count 2")
    E("  .amdhsa_user_sgpr_kernarg_segment_ptr 1")
    E("  .amdhsa_system_sgpr_workgroup_id_x 1")
    E(".end_amdhsa_kernel")

hdr=open(f"cdna_kernels/{NAME}.s.ref").read().split("; Override")[0]
E(hdr.rstrip())
E("; @launch kernel=k0_kernel grid=(320,1,1) block=(256,1,1) lds=9216")
E(f"; @launch kernel=k1_kernel grid=(640,1,1) block=(256,1,1) lds={K1_LDS}")
E("; @launch kernel=k2_kernel grid=(512,1,1) block=(256,1,1) lds=0")
E("; @launch kernel=k3_kernel grid=(54,1,1) block=(512,1,1) lds=17920")
E('.amdgcn_target "amdgcn-amd-amdhsa--gfx950"')
E(".text")
k0(); k1(); k2(); k3()
E('.section .rodata,"a"')
for n in ["k0_kernel","k1_kernel","k2_kernel","k3_kernel"]:
    E(".p2align 6")
    desc(n)
open("stamp.s" if STAMP else f"cdna_kernels/{NAME}.s","w").write("\n".join(out)+"\n")
```
